```python
import torch

def _softmax(x, axis=-1):
    return torch.softmax(x, dim=axis)
def _gelu(x):
    return torch.nn.functional.gelu(x, approximate="tanh")
def _silu(x):
    return torch.nn.functional.silu(x)
def _sigmoid(x):
    return torch.sigmoid(x)
def _layernorm(x, axis=-1, eps=1e-5):
    m = x.mean(dim=axis, keepdim=True)
    v = x.var(dim=axis, keepdim=True, unbiased=False)
    return (x - m) / torch.sqrt(v + eps)
def _scatter_add(tgt, idx, src, axis=0):
    return tgt.clone().index_add_(axis, idx, src)
def _segment_sum(src, seg, n):
    out = torch.zeros((n,) + src.shape[1:], dtype=src.dtype)
    return out.index_add_(0, seg, src)
def _pad(x, pw):
    flat = tuple(v for pair in reversed(pw) for v in pair)
    return torch.nn.functional.pad(x, flat)

kernel_name = 'recurrent_scan__sliding_block_cached__dense_activation_relu__decode'

def setup_inputs():

    _w = (lambda a: (lambda t: t.to(torch.bfloat16) if t.is_floating_point() else t)(torch.as_tensor(a)))
    def _A_setup():
        B, Sq, D = 2, 1, 640
        Hq, Hkv, Sk, Dh = 32, 32, 8192, 128
        assert Hq % Hkv == 0, (Hq, Hkv)
        return {
            "x": _w((lambda *s: torch.randn(*s, dtype=torch.bfloat16) * 0.05)(B, Sq, D)),
            "k_cache": _w((lambda *s: torch.randn(*s, dtype=torch.bfloat16) * 1.6)(B, Hkv, Sk, Dh)),
            "v_cache": _w((lambda *s: torch.randn(*s, dtype=torch.bfloat16) * 0.2)(B, Hkv, Sk, Dh)),
            "wq": _w((lambda *s: torch.randn(*s, dtype=torch.bfloat16) * 1.6)(D, Hq * Dh) * (D ** -0.5)),
            "wo": _w((lambda *s: torch.randn(*s, dtype=torch.bfloat16) * 0.2)(Hq * Dh, D) * ((Hq * Dh) ** -0.5)),
        }
    _A_in = _A_setup()

    def _B_setup():
        B, S, D, Dff = 2, 1, 640, 1728
        return {
            "x": _w((lambda *s: torch.randn(*s, dtype=torch.bfloat16) * 0.05)(B, S, D)),
            "w1": _w((lambda *s: torch.randn(*s, dtype=torch.bfloat16) * 0.1)(D, Dff)),
            "w2": _w((lambda *s: torch.randn(*s, dtype=torch.bfloat16) * 0.1)(Dff, D)),
        }
    _B_in = _B_setup()

    return {
        "A_x": _A_in["x"],
        "A_k_cache": _A_in["k_cache"],
        "A_v_cache": _A_in["v_cache"],
        "A_wq": _A_in["wq"],
        "A_wo": _A_in["wo"],
        "B_x": _B_in["x"],
        "B_w1": _B_in["w1"],
        "B_w2": _B_in["w2"],
    }

def reference(A_x, A_k_cache, A_v_cache, A_wq, A_wo, B_x, B_w1, B_w2):
    def _A_ref(x, k_cache, v_cache, wq, wo):
        B, Sq, D = x.shape
        Hq, Dh = 32, 128
        Hkv, Sk = k_cache.shape[1], k_cache.shape[2]
        W = min(4096, max(256, Sk // 4))
        rep = Hq // Hkv
        q = (lambda x, *d: x.permute(*d))((x @ wq).reshape(B, Sq, Hq, Dh), 0, 2, 1, 3)
        k = (lambda x, n, axis: torch.repeat_interleave(x, n, dim=axis))(k_cache[:, :, Sk - W:, :], rep, axis=1)
        v = (lambda x, n, axis: torch.repeat_interleave(x, n, dim=axis))(v_cache[:, :, Sk - W:, :], rep, axis=1)
        scores = torch.einsum("bhqd,bhkd->bhqk", q, k) * (Dh ** -0.5)
        p = _softmax(scores, axis=-1)
        o = torch.einsum("bhqk,bhkd->bhqd", p, v)
        return (lambda x, *d: x.permute(*d))(o, 0, 2, 1, 3).reshape(B, Sq, Hq * Dh) @ wo

    def _B_ref(x, w1, w2):
        h = torch.einsum("bsd,df->bsf", x, w1)
        zero = torch.zeros_like(h)
        h = torch.maximum(h, zero)
        return torch.einsum("bsf,fd->bsd", h, w2)

    x = A_x
    xn = _layernorm(x, axis=-1)
    s = _A_ref(xn, A_k_cache, A_v_cache, A_wq, A_wo)
    g = _silu(_B_ref(xn, B_w1, B_w2))
    return x + s * g
```

```python
import re

TRANS = ("v_exp_f32", "v_log_f32", "v_rcp_f32", "v_rsq_f32", "v_sqrt_f32", "v_sin_f32", "v_cos_f32")


def _regs(tok):
    tok = tok.strip()
    m = re.fullmatch(r"([vs])(\d+)", tok)
    if m:
        return [(m.group(1), int(m.group(2)))]
    m = re.fullmatch(r"([vs])\[(\d+):(\d+)\]", tok)
    if m:
        return [(m.group(1), i) for i in range(int(m.group(2)), int(m.group(3)) + 1)]
    if tok in ("vcc", "vcc_lo", "vcc_hi"):
        return [("vcc", 0)]
    if tok in ("exec", "exec_lo", "exec_hi"):
        return [("exec", 0)]
    if tok == "m0":
        return [("m0", 0)]
    return []


class Ins:
    __slots__ = ("text", "op", "dst", "src", "kind", "dpp", "states", "storedata", "srcc", "passes")

    def __init__(self, text):
        self.text = text
        t = text.split(";")[0].strip()
        self.kind = "other"
        self.dst = []
        self.src = []
        self.dpp = False
        self.states = 1
        self.storedata = []
        self.srcc = []
        self.passes = 0
        if not t or t.endswith(":") or t.startswith("."):
            self.op = "label" if t.endswith(":") else "dir"
            self.kind = self.op
            self.states = 0
            return
        parts = t.split(None, 1)
        op = parts[0]
        self.op = op
        rest = parts[1] if len(parts) > 1 else ""
        ops = []
        cur = ""
        depth = 0
        for ch in rest:
            if ch == "[":
                depth += 1
            if ch == "]":
                depth -= 1
            if ch == "," and depth == 0:
                ops.append(cur)
                cur = ""
            else:
                cur += ch
        if cur.strip():
            ops.append(cur)
        mods = ""
        if ops:
            lp = ops[-1].strip().split(None, 1)
            ops[-1] = lp[0]
            if len(lp) > 1:
                mods = lp[1]
        ops = [o.strip() for o in ops]
        R = [_regs(o) for o in ops]
        if op == "s_nop":
            self.kind = "nop"
            self.states = int(ops[0]) + 1
        elif op.startswith("v_mfma"):
            self.kind = "mfma"
            self.passes = 4 if "16x16" in op else 8
            self.dst = R[0]
            self.src = R[1] + R[2]
            self.srcc = R[3] if len(R) > 3 else []
        elif op.startswith("v_"):
            self.kind = "valu"
            self.dpp = ("row_" in mods) or ("quad_perm" in mods) or op.endswith("_dpp")
            if op.startswith("v_permlane") and "swap" in op:
                self.kind = "permlane"
                self.dst = R[0] + R[1]
                self.src = R[0] + R[1]
            elif op.startswith("v_cmp"):
                self.dst = R[0]
                self.src = sum(R[1:], [])
                if op.startswith("v_cmpx"):
                    self.dst = self.dst + [("exec", 0)]
            else:
                self.dst = R[0]
                self.src = sum(R[1:], [])
                if op in ("v_add_co_u32", "v_sub_co_u32", "v_addc_co_u32", "v_subb_co_u32", "v_div_scale_f32"):
                    self.dst = R[0] + R[1]
                    self.src = sum(R[2:], [])
                if op.startswith("v_dot2c") or op.startswith("v_fmac") or op.startswith("v_mac") or self.dpp or op.startswith("v_writelane"):
                    self.src = self.src + R[0]
                if op in ("v_cndmask_b32", "v_cndmask_b32_e32") and len(ops) == 3:
                    self.src = self.src + [("vcc", 0)]
            if op.startswith("v_dot"):
                self.kind = "dot"
        elif op.startswith("buffer_") or op.startswith("global_"):
            self.kind = "vmem"
            if "load" in op:
                self.dst = R[0]
                self.src = sum(R[1:], [])
            else:
                self.src = sum(R, [])
                if op.startswith("buffer_"):
                    d = R[0]
                else:
                    d = R[1]
                if len(d) >= 3:
                    self.storedata = d
        elif op.startswith("ds_"):
            self.kind = "ds"
            if "read" in op or "rtn" in op:
                self.dst = R[0]
                self.src = sum(R[1:], [])
            else:
                self.src = sum(R, [])
        elif op.startswith("s_"):
            self.kind = "salu"
            if op.startswith(("s_cmp", "s_cbranch", "s_branch", "s_waitcnt", "s_barrier", "s_sleep", "s_setprio", "s_endpgm")):
                self.src = sum(R, [])
            else:
                self.dst = R[0] if R else []
                self.src = sum(R[1:], [])

    @property
    def is_valu(self):
        return self.kind in ("valu", "dot", "permlane")


def need(prod, cons):
    n = 0
    pd = set(prod.dst)
    cs = set(cons.src)
    cd = set(cons.dst)
    pv = {r for r in pd if r[0] == "v"}
    ps = {r for r in pd if r[0] in ("s", "vcc")}
    if prod.is_valu:
        if pv & cs:
            if cons.dpp:
                n = max(n, 2)
            if cons.kind == "permlane":
                n = max(n, 2)
            if cons.op.startswith(("v_readlane", "v_readfirstlane")):
                n = max(n, 1)
            if cons.kind == "mfma":
                n = max(n, 2)
            if prod.op.split("_e")[0] in TRANS or prod.op in TRANS:
                if cons.is_valu or cons.kind == "mfma":
                    n = max(n, 1)
        if cons.kind == "mfma" and pv & set(cons.srcc):
            n = max(n, 2)
        if prod.kind == "dot":
            if (pv & cs) or (pv & cd) or (pv & set(cons.srcc)):
                same = cons.op == prod.op
                if same:
                    ab = set(cons.src[:]) if prod.op.startswith("v_dot2c") else None
                    t = cons.text.split(";")[0]
                    opsl = [x.strip() for x in t.split(None, 1)[1].split(",")]
                    a_b = set(_regs(opsl[1]) + _regs(opsl[2]))
                    if pv & a_b:
                        n = max(n, 3)
                else:
                    if cons.kind != "salu":
                        n = max(n, 3)
        if ps & cs:
            if cons.is_valu or cons.kind == "mfma":
                n = max(n, 2)
                if cons.op.startswith(("v_readlane", "v_writelane")):
                    n = max(n, 4)
            if cons.kind in ("vmem",):
                n = max(n, 5)
        if ("exec", 0) in pd:
            if cons.dpp:
                n = max(n, 5)
            if cons.kind == "mfma":
                n = max(n, 4)
            if cons.op.startswith(("v_readlane", "v_readfirstlane", "v_writelane")) or cons.kind == "permlane":
                n = max(n, 4)
    if prod.kind == "mfma":
        base = {4: 8, 8: 12}[prod.passes]
        if cons.kind == "mfma":
            if pd & cs:
                n = max(n, base)
            c = set(cons.srcc)
            if pd & c:
                if c == pd and cons.passes == prod.passes:
                    pass
                else:
                    n = max(n, base - 2)
            elif pd & cd:
                n = max(n, base)
        else:
            if (pd & cs) or (pd & cd):
                n = max(n, base)
        if cons.is_valu and set(prod.srcc) & cd:
            n = max(n, {4: 3, 8: 7}[prod.passes])
    if prod.kind == "vmem" and prod.storedata:
        if set(prod.storedata) & cd:
            n = max(n, 2)
    return n


class Asm:
    def __init__(self):
        self.lines = []

    def __call__(self, s):
        for l in s.split("\n"):
            self.lines.append(l)

    def label(self, name):
        self.lines.append(f"{name}:")

    def resolve(self):
        out = []
        for l in self.lines:
            ins = Ins(l)
            if ins.kind in ("label", "dir"):
                out.append(ins)
                continue
            req = 0
            dist = 0
            for p in reversed(out):
                if dist >= 14:
                    break
                if p.kind in ("label", "dir"):
                    continue
                n = need(p, ins)
                if n - dist > req:
                    req = n - dist
                dist += p.states
            while req > 0:
                k = min(req, 16)
                out.append(Ins(f"  s_nop {k-1}"))
                req -= k
            out.append(ins)
        return "\n".join(i.text for i in out)
```

```python
import sys, os
sys.path.insert(0, "work")
from asmlib import Asm

NAME = "recurrent_scan__sliding_block_cached__dense_activation_relu__decode"

E1Q = 0x0
E1H = 0x40000
E2S = 0x60000
E2T = 0xA0000
E3 = 0xB0000
E3B = 160 * 2560
TS = 0x400000

F_Q, F_CLR, F_P, F_O, F_VI = 0, 4, 16, 32, 48
L_Q, L_O, L_P, L_XN0, L_XN1, L_HB = 256, 512, 1024, 5120, 5888, 6656
LDS_BYTES = 8192

SPIN_G = 1 << 17
SPIN_L = 1 << 21


class Cfg:
    nt_kv = "nt"
    nt_w = "nt"
    nt_wo = "nt"
    stamps = False
    prio = True


def gen(cfg=Cfg):
    a = Asm()
    uid = [0]

    def lab(p):
        uid[0] += 1
        return f"L_{p}_{uid[0]}"

    def stamp(i):
        if not cfg.stamps:
            return
        a("  s_memrealtime s[62:63]")
        a("  s_waitcnt lgkmcnt(0)")
        a(f"  v_writelane_b32 v167, s62, {i}")

    def stamp_flush():
        if not cfg.stamps:
            return
        a("  s_mul_i32 s62, s2, 12")
        a("  s_add_u32 s62, s62, s3")
        a("  s_lshl_b32 s62, s62, 6")
        a(f"  s_add_u32 s62, s62, {TS}")
        a("  v_lshlrev_b32 v166, 2, v0")
        a("  v_add_u32 v166, s62, v166")
        a("  s_mov_b64 exec, 0xffff")
        a("  global_store_dword v166, v167, s[36:37]")
        a("  s_mov_b64 exec, -1")

    def srd(base, lo, size):
        a(f"  s_mov_b32 s{base}, s{lo}")
        a(f"  s_and_b32 s{base+1}, s{lo+1}, 0xffff")
        a(f"  s_mov_b32 s{base+2}, {size}")
        a(f"  s_mov_b32 s{base+3}, 0x20000")

    def wait_lds(off, vz, vt, n=1, sleep=2):
        L = lab("wl")
        D = lab("wld")
        a("  s_mov_b32 s9, 0")
        a(f"{L}:")
        if n == 1:
            a(f"  ds_read_b32 v{vt}, v{vz} offset:{off}")
            a("  s_waitcnt lgkmcnt(0)")
        else:
            a(f"  ds_read_b128 v[{vt}:{vt+3}], v{vz} offset:{off}")
            a("  s_waitcnt lgkmcnt(0)")
            a(f"  v_and_b32 v{vt}, v{vt}, v{vt+1}")
            a(f"  v_and_b32 v{vt+2}, v{vt+2}, v{vt+3}")
            a(f"  v_and_b32 v{vt}, v{vt}, v{vt+2}")
        a(f"  v_readfirstlane_b32 s8, v{vt}")
        a("  s_cmp_lg_u32 s8, 0")
        a(f"  s_cbranch_scc1 {D}")
        if sleep:
            a(f"  s_sleep {sleep}")
        a("  s_add_u32 s9, s9, 1")
        a(f"  s_cmp_lt_u32 s9, {SPIN_L}")
        a(f"  s_cbranch_scc1 {L}")
        a(f"{D}:")

    def set_lds_flag(off, vz, vone):
        a(f"  ds_write_b32 v{vz}, v{vone} offset:{off}")

    def wave_allreduce_row(v, op="v_add_f32"):
        for r in (8, 4, 2, 1):
            a(f"  {op}_dpp v{v}, v{v}, v{v} row_ror:{r} row_mask:0xf bank_mask:0xf")

    def rne(dst, src):
        a(f"  v_cvt_pk_bf16_f32 v{dst}, v{src}, v{src}")
        a(f"  v_lshlrev_b32 v{dst}, 16, v{dst}")

    a(f"; @launch grid=(256,1,1) block=(768,1,1) lds={LDS_BYTES}")
    a('.amdgcn_target "amdgcn-amd-amdhsa--gfx950"')
    a(".text")
    a(f".globl {NAME}_kernel")
    a(".p2align 8")
    a(f".type {NAME}_kernel,@function")
    a(f"{NAME}_kernel:")
    a("  s_cmp_ge_u32 s2, 256")
    a("  s_cbranch_scc1 L_end")
    a("  s_load_dwordx16 s[16:31], s[0:1], 0")
    a("  s_load_dwordx4 s[32:35], s[0:1], 64")
    a("  s_load_dwordx2 s[36:37], s[0:1], 80")
    a("  v_lshrrev_b32 v1, 6, v0")
    a("  v_and_b32 v0, 63, v0")
    a("  v_readfirstlane_b32 s3, v1")
    a("  s_and_b32 s8, s2, 7")
    a("  s_lshr_b32 s9, s2, 3")
    a("  s_lshr_b32 s10, s9, 3")
    a("  s_lshl_b32 s4, s8, 2")
    a("  s_add_u32 s4, s4, s10")
    a("  s_and_b32 s5, s9, 7")
    a("  s_lshr_b32 s6, s5, 2")
    a("  s_and_b32 s7, s5, 3")
    a("  s_lshl_b32 s11, s4, 3")
    a("  s_add_u32 s11, s11, s5")
    a("  v_mov_b32 v1, 0")
    a("  v_mov_b32 v2, 1")
    a("  s_cmp_lg_u32 s3, 0")
    a("  s_cbranch_scc1 L_noinit")
    a("  v_lshlrev_b32 v3, 2, v0")
    a("  ds_write_b32 v3, v1")
    a("  s_waitcnt lgkmcnt(0)")
    a("L_noinit:")
    a("  s_barrier")
    if cfg.stamps:
        a("  v_mov_b32 v167, 0")
    stamp(0)
    a("  s_waitcnt lgkmcnt(0)")
    a("  s_cmp_ge_u32 s3, 8")
    a("  s_cbranch_scc1 L_vwave")
    a("  s_cmp_ge_u32 s3, 4")
    a("  s_cbranch_scc1 L_kwave")
    if cfg.prio:
        a("  s_setprio 3")
    a("  s_cmp_eq_u32 s3, 1")
    a("  s_cbranch_scc1 L_aux1")
    a("  s_cmp_eq_u32 s3, 2")
    a("  s_cbranch_scc1 L_aux2")
    a("  s_cmp_eq_u32 s3, 3")
    a("  s_cbranch_scc1 L_aux3")

    def ln_issue():
        a("  v_lshrrev_b32 v3, 5, v0")
        a("  v_and_b32 v4, 31, v0")
        a("  v_mul_u32_u24 v5, 1280, v3")
        a("  v_lshl_add_u32 v6, v4, 3, v5")
        for i in range(5):
            a(f"  global_load_dwordx2 v[{20+2*i}:{21+2*i}], v6, s[16:17] offset:{256*i}")
        a("  v_min_u32 v7, 19, v4")
        a("  v_lshl_add_u32 v7, v7, 3, v5")
        a("  s_mul_i32 s8, s5, 160")
        a("  v_add_u32 v7, s8, v7")
        a("  global_load_dwordx2 v[30:31], v7, s[16:17]")

    def ln_compute(nafter, xn_off):
        X = 120
        a(f"  s_waitcnt vmcnt({nafter+1})")
        for i in range(10):
            a(f"  v_lshlrev_b32 v{X+2*i}, 16, v{20+i}")
            a(f"  v_and_b32 v{X+2*i+1}, 0xffff0000, v{20+i}")
        for i in range(10):
            a(f"  v_add_f32 v{140+i}, v{X+2*i}, v{X+2*i+1}")
        for i in range(5):
            a(f"  v_add_f32 v{140+i}, v{140+i}, v{145+i}")
        a("  v_add_f32 v140, v140, v141")
        a("  v_add_f32 v142, v142, v143")
        a("  v_add_f32 v140, v140, v144")
        a("  v_add_f32 v140, v140, v142")

        def half_allreduce(v, t):
            wave_allreduce_row(v)
            a(f"  v_mov_b32 v{t}, v{v}")
            a(f"  v_permlane16_swap_b32 v{v}, v{t}")
            a(f"  v_add_f32 v{v}, v{v}, v{t}")

        def div640(v, t, e):
            a(f"  v_mul_f32 v{t}, 0x3acccccd, v{v}")
            a(f"  v_fma_f32 v{e}, v{t}, s12, v{v}")
            a(f"  v_fmac_f32 v{t}, 0x3acccccd, v{e}")
            a(f"  v_mov_b32 v{v}, v{t}")

        a("  s_mov_b32 s12, 0xc4200000")
        half_allreduce(140, 141)
        div640(140, 141, 142)
        for i in range(20):
            a(f"  v_sub_f32 v{X+i}, v{X+i}, v140")
        a(f"  v_mul_f32 v141, v{X}, v{X}")
        a(f"  v_mul_f32 v142, v{X+1}, v{X+1}")
        for i in range(2, 20, 2):
            a(f"  v_fmac_f32 v141, v{X+i}, v{X+i}")
            a(f"  v_fmac_f32 v142, v{X+i+1}, v{X+i+1}")
        a("  v_add_f32 v141, v141, v142")
        half_allreduce(141, 142)
        div640(141, 142, 143)
        rne(140, 140)
        rne(141, 141)
        a("  v_add_f32 v141, 0x3727c5ac, v141")
        rne(141, 141)
        a("  v_sqrt_f32 v141, v141")
        rne(141, 141)
        a("  v_rcp_f32 v142, v141")
        a(f"  s_waitcnt vmcnt({nafter})")
        a("  v_lshlrev_b32 v144, 16, v30")
        a("  v_and_b32 v145, 0xffff0000, v30")
        a("  v_lshlrev_b32 v146, 16, v31")
        a("  v_and_b32 v147, 0xffff0000, v31")
        for i in range(4):
            a(f"  v_sub_f32 v{144+i}, v{144+i}, v140")
        for i in range(4):
            rne(144 + i, 144 + i)
        for i in range(4):
            a(f"  v_mul_f32 v{148+i}, v{144+i}, v142")
        for i in range(4):
            a(f"  v_fma_f32 v{152+i}, -v{148+i}, v141, v{144+i}")
        for i in range(4):
            a(f"  v_fmac_f32 v{148+i}, v{152+i}, v142")
        for i in range(4):
            a(f"  v_cvt_pk_bf16_f32 v{148+i}, v{148+i}, v{148+i}")
        a("  v_mul_u32_u24 v143, 320, v3")
        a("  v_lshl_add_u32 v143, v4, 2, v143")
        a("  s_mov_b32 exec_lo, 0xfffff")
        a("  s_mov_b32 exec_hi, 0xfffff")
        for g in range(4):
            a(f"  ds_write_b32 v143, v{148+g} offset:{xn_off+80*g}")
        a("  s_mov_b64 exec, -1")

    def const_masks(nm, base, vt):
        a(f"  v_and_b32 v{vt}, 1, v0")
        a(f"  v_lshlrev_b32 v{vt}, 4, v{vt}")
        a(f"  v_mov_b32 v{vt+1}, 0xffff")
        a(f"  v_lshlrev_b32 v{vt}, v{vt}, v{vt+1}")
        a(f"  v_bfe_u32 v{vt+1}, v0, 1, {2 if nm == 4 else 1}")
        for j in range(nm):
            a(f"  v_cmp_eq_u32 vcc, {j}, v{vt+1}")
            a(f"  v_cndmask_b32 v{base+j}, 0, v{vt}, vcc")

    def poll_group_flags(vt):
        L = lab("gf")
        D = lab("gfd")
        a("  s_lshl_b32 s8, s4, 3")
        a(f"  v_mov_b32 v{vt+2}, s8")
        a("  s_mov_b32 s9, 0")
        a(f"{L}:")
        a(f"  global_load_dwordx2 v[{vt}:{vt+1}], v{vt+2}, s[34:35] sc1")
        a("  s_waitcnt vmcnt(0)")
        a(f"  v_and_b32 v{vt}, v{vt}, v{vt+1}")
        a(f"  v_readfirstlane_b32 s8, v{vt}")
        a("  s_cmp_eq_u32 s8, 0x01010101")
        a(f"  s_cbranch_scc1 {D}")
        a("  s_add_u32 s9, s9, 1")
        a(f"  s_cmp_lt_u32 s9, {SPIN_G}")
        a(f"  s_cbranch_scc1 {L}")
        a(f"{D}:")

    a("L_aux0:")
    ln_issue()
    srd(40, 22, 640 * 8192)
    a("  v_lshrrev_b32 v8, 4, v0")
    a("  v_and_b32 v9, 15, v0")
    a("  v_lshlrev_b32 v10, 13, v8")
    a("  v_lshl_add_u32 v10, v9, 4, v10")
    a("  s_mul_i32 s12, s5, 80*8192")
    a("  s_lshl_b32 s13, s4, 8")
    a("  s_add_u32 s12, s12, s13")
    for t in range(20):
        a(f"  buffer_load_dwordx4 v[{40+4*t}:{43+4*t}], v10, s[40:43], s12 offen {cfg.nt_w}")
        if t < 19:
            a("  s_add_u32 s12, s12, 32768")
    const_masks(4, 156, 160)
    ln_compute(20, L_XN0)
    a("  v_bfe_u32 v11, v0, 3, 1")
    a("  v_lshl_add_u32 v11, v11, 2, v8")
    a("  v_mul_u32_u24 v11, 80, v11")
    a("  s_waitcnt lgkmcnt(0)")
    for i in range(5):
        a(f"  ds_read_b128 v[{120+4*i}:{123+4*i}], v11 offset:{L_XN0+16*i}")
    a("  s_waitcnt lgkmcnt(0)")
    stamp(1)
    for t in range(20):
        A = 140 + 4 * (t & 1)
        for j in range(4):
            a(f"  v_and_b32 v{A+j}, v{120+t}, v{156+j}")
        a(f"  s_waitcnt vmcnt({19-t})")
        c = "0" if t == 0 else "v[148:151]"
        a(f"  v_mfma_f32_16x16x32_bf16 v[148:151], v[{A}:{A+3}], v[{40+4*t}:{43+4*t}], {c}")
    a("  v_lshrrev_b32 v12, 1, v8")
    a("  v_lshlrev_b32 v12, 9, v12")
    a("  v_lshl_add_u32 v12, v9, 5, v12")
    a("  v_and_b32 v13, 1, v8")
    a("  v_lshl_add_u32 v12, v13, 4, v12")
    a("  s_lshl_b32 s12, s11, 10")
    a(f"  s_add_u32 s12, s12, {E1Q}")
    a("  v_add_u32 v12, s12, v12")
    wait_lds(F_CLR, 1, 14)
    a("  v_mov_b32 v14, -2")
    for r in range(4):
        a(f"  v_min_u32 v{148+r}, v{148+r}, v14")
    a("  global_store_dwordx4 v12, v[148:151], s[36:37] sc1")
    stamp(2)
    poll_group_flags(16)
    stamp(3)
    a("  s_lshl_b32 s12, s4, 13")
    a("  s_lshl_b32 s13, s6, 9")
    a("  s_add_u32 s12, s12, s13")
    a(f"  s_add_u32 s12, s12, {E1Q+4096}")
    a("  v_lshlrev_b32 v12, 3, v0")
    a("  v_add_u32 v12, s12, v12")
    L = lab("qp")
    D = lab("qpd")
    a("  s_mov_b32 s9, 0")
    a(f"{L}:")
    for p in range(8):
        a(f"  global_load_dwordx2 v[{20+2*p}:{21+2*p}], v12, s[36:37] offset:{p*1024-4096} sc1")
    a("  s_waitcnt vmcnt(0)")
    a("  v_max3_u32 v36, v20, v21, v22")
    a("  v_max3_u32 v37, v23, v24, v25")
    a("  v_max3_u32 v38, v26, v27, v28")
    a("  v_max3_u32 v39, v29, v30, v31")
    a("  v_max3_u32 v36, v36, v32, v33")
    a("  v_max3_u32 v37, v37, v34, v35")
    a("  v_max3_u32 v36, v36, v38, v39")
    a("  v_max_u32 v36, v36, v37")
    a("  v_cmp_eq_u32 vcc, -1, v36")
    a(f"  s_cbranch_vccz {D}")
    a("  s_add_u32 s9, s9, 1")
    a(f"  s_cmp_lt_u32 s9, {SPIN_G}")
    a(f"  s_cbranch_scc1 {L}")
    a(f"{D}:")
    for p in range(1, 8):
        a(f"  v_add_f32 v20, v20, v{20+2*p}")
        a(f"  v_add_f32 v21, v21, v{21+2*p}")
    a("  v_cvt_pk_bf16_f32 v20, v20, v21")
    a("  v_lshlrev_b32 v12, 2, v0")
    a(f"  ds_write_b32 v12, v20 offset:{L_Q}")
    set_lds_flag(F_Q, 1, 2)
    stamp(4)
    stamp_flush()
    a("  s_endpgm")

    a("L_aux1:")
    a("  s_cmp_ge_u32 s4, 27")
    a("  s_cbranch_scc1 L_end")
    ln_issue()
    srd(40, 28, 640 * 3456)
    a("  v_lshrrev_b32 v8, 4, v0")
    a("  v_and_b32 v9, 15, v0")
    a("  v_mul_u32_u24 v10, 3456, v8")
    a("  v_lshl_add_u32 v10, v9, 3, v10")
    a("  s_mul_i32 s12, s5, 80*3456")
    a("  s_lshl_b32 s13, s4, 7")
    a("  s_add_u32 s12, s12, s13")
    for t in range(20):
        a(f"  buffer_load_dwordx2 v[{40+2*t}:{41+2*t}], v10, s[40:43], s12 offen {cfg.nt_w}")
        if t < 19:
            a("  s_add_u32 s12, s12, 13824")
    const_masks(2, 156, 160)
    ln_compute(20, L_XN1)
    a("  v_bfe_u32 v11, v0, 2, 1")
    a("  v_lshl_add_u32 v11, v11, 2, v8")
    a("  v_mul_u32_u24 v11, 80, v11")
    a("  s_waitcnt lgkmcnt(0)")
    for i in range(5):
        a(f"  ds_read_b128 v[{120+4*i}:{123+4*i}], v11 offset:{L_XN1+16*i}")
    a("  s_waitcnt lgkmcnt(0)")
    for t in range(20):
        A = 140 + 2 * (t & 1)
        for j in range(2):
            a(f"  v_and_b32 v{A+j}, v{120+t}, v{156+j}")
        a(f"  s_waitcnt vmcnt({19-t})")
        c = "0" if t == 0 else "v[148:151]"
        a(f"  v_mfma_f32_16x16x16_bf16 v[148:151], v[{A}:{A+1}], v[{40+2*t}:{41+2*t}], {c}")
    a("  v_lshlrev_b32 v12, 8, v8")
    a("  v_lshl_add_u32 v12, v9, 4, v12")
    a("  s_lshl_b32 s12, s11, 9")
    a(f"  s_add_u32 s12, s12, {E1H}")
    a("  v_add_u32 v12, s12, v12")
    wait_lds(F_CLR, 1, 14)
    a("  v_mov_b32 v14, -2")
    for r in range(4):
        a(f"  v_min_u32 v{148+r}, v{148+r}, v14")
    a("  s_mov_b64 exec, 0xffffffff")
    a("  global_store_dwordx4 v12, v[148:151], s[36:37] sc1")
    a("  s_mov_b64 exec, -1")
    stamp(1)
    a("  s_cmp_ge_u32 s5, 5")
    a("  s_cbranch_scc1 L_aux1_done")
    srd(44, 30, 1728 * 1280)
    a("  v_mul_u32_u24 v10, 1280, v8")
    a("  v_lshl_add_u32 v10, v9, 4, v10")
    a("  s_mul_i32 s12, s4, 64*1280")
    a("  s_lshl_b32 s13, s5, 8")
    a("  s_add_u32 s12, s12, s13")
    for t in range(16):
        a(f"  buffer_load_dwordx4 v[{40+4*t}:{43+4*t}], v10, s[44:47], s12 offen {cfg.nt_w}")
        if t < 15:
            a("  s_add_u32 s12, s12, 5120")
    const_masks(4, 156, 160)
    poll_group_flags(16)
    a("  s_lshl_b32 s12, s4, 12")
    a(f"  s_add_u32 s12, s12, {E1H}")
    a("  v_lshlrev_b32 v12, 3, v0")
    a("  v_add_u32 v12, s12, v12")
    L = lab("hp")
    D = lab("hpd")
    a("  s_mov_b32 s9, 0")
    a(f"{L}:")
    for p in range(8):
        a(f"  global_load_dwordx2 v[{20+2*p}:{21+2*p}], v12, s[36:37] offset:{p*512} sc1")
    a("  s_waitcnt vmcnt(0)")
    a("  v_max3_u32 v36, v20, v21, v22")
    a("  v_max3_u32 v37, v23, v24, v25")
    a("  v_max3_u32 v38, v26, v27, v28")
    a("  v_max3_u32 v39, v29, v30, v31")
    a("  v_max3_u32 v36, v36, v32, v33")
    a("  v_max3_u32 v37, v37, v34, v35")
    a("  v_max3_u32 v36, v36, v38, v39")
    a("  v_max_u32 v36, v36, v37")
    a("  v_cmp_eq_u32 vcc, -1, v36")
    a(f"  s_cbranch_vccz {D}")
    a("  s_add_u32 s9, s9, 1")
    a(f"  s_cmp_lt_u32 s9, {SPIN_G}")
    a(f"  s_cbranch_scc1 {L}")
    a(f"{D}:")
    for p in range(1, 8):
        a(f"  v_add_f32 v20, v20, v{20+2*p}")
        a(f"  v_add_f32 v21, v21, v{21+2*p}")
    a("  v_max_f32 v20, 0, v20")
    a("  v_max_f32 v21, 0, v21")
    a("  v_cvt_pk_bf16_f32 v20, v20, v20")
    a("  v_cvt_pk_bf16_f32 v21, v21, v21")
    a("  v_lshrrev_b32 v12, 5, v0")
    a("  v_lshlrev_b32 v12, 8, v12")
    a("  v_and_b32 v13, 1, v0")
    a("  v_lshl_add_u32 v12, v13, 7, v12")
    a("  v_bfe_u32 v13, v0, 1, 4")
    a("  v_lshl_add_u32 v12, v13, 2, v12")
    a(f"  ds_write_b32 v12, v20 offset:{L_HB}")
    a(f"  ds_write_b32 v12, v21 offset:{L_HB+64}")
    a("  v_bfe_u32 v11, v0, 3, 1")
    a("  v_lshl_add_u32 v11, v11, 2, v8")
    a("  v_lshlrev_b32 v11, 6, v11")
    a("  s_waitcnt lgkmcnt(0)")
    for i in range(4):
        a(f"  ds_read_b128 v[{120+4*i}:{123+4*i}], v11 offset:{L_HB+16*i}")
    a("  s_waitcnt lgkmcnt(0)")
    for t in range(16):
        A = 140 + 4 * (t & 1)
        for j in range(4):
            a(f"  v_and_b32 v{A+j}, v{120+t}, v{156+j}")
        c = "0" if t == 0 else "v[148:151]"
        a(f"  v_mfma_f32_16x16x32_bf16 v[148:151], v[{A}:{A+3}], v[{40+4*t}:{43+4*t}], {c}")
    a("  v_lshrrev_b32 v12, 1, v8")
    a(f"  v_mul_u32_u24 v12, {E3B}, v12")
    a("  v_lshl_add_u32 v12, v9, 5, v12")
    a("  v_and_b32 v13, 1, v8")
    a("  v_lshl_add_u32 v12, v13, 4, v12")
    a("  s_add_u32 s12, s4, 128")
    a("  s_mul_i32 s12, s12, 2560")
    a("  s_lshl_b32 s13, s5, 9")
    a("  s_add_u32 s12, s12, s13")
    a(f"  s_add_u32 s12, s12, {E3}")
    a("  v_add_u32 v12, s12, v12")
    a("  v_mov_b32 v14, -2")
    for r in range(4):
        a(f"  v_min_u32 v{148+r}, v{148+r}, v14")
    a("  global_store_dwordx4 v12, v[148:151], s[36:37] sc1")
    a("L_aux1_done:")
    stamp(2)
    stamp_flush()
    a("  s_endpgm")

    def wo_issue(stile):
        srd(44, 24, 4096 * 1280)
        a("  v_lshrrev_b32 v8, 4, v0")
        a("  v_and_b32 v9, 15, v0")
        a("  v_mul_u32_u24 v10, 8*1280, v8")
        a("  v_lshl_add_u32 v10, v9, 4, v10")
        a("  s_lshl_b32 s12, s4, 7")
        a("  s_lshl_b32 s13, s7, 5")
        a("  s_add_u32 s12, s12, s13")
        a("  s_mul_i32 s12, s12, 1280")
        a(f"  s_lshl_b32 s13, s{stile}, 8")
        a("  s_add_u32 s12, s12, s13")
        a("  s_add_u32 s13, s12, 5120")
        for i in range(8):
            so = "s12" if i < 4 else "s13"
            a(f"  buffer_load_dwordx4 v[{16+4*i}:{19+4*i}], v10, s[44:47], {so} offen offset:{(i&3)*1280} {cfg.nt_wo}")

    def wo_prep():
        a("  s_mov_b32 s14, 0x05040100")
        a("  s_mov_b32 s15, 0x07060302")
        for d in range(4):
            for q in range(4):
                ev = 16 + 4 * (2 * q) + d
                od = 16 + 4 * (2 * q + 1) + d
                a(f"  v_perm_b32 v{48+4*(2*d)+q}, v{od}, v{ev}, s14")
                a(f"  v_perm_b32 v{48+4*(2*d+1)+q}, v{od}, v{ev}, s15")

    def wo_finish(stile):
        a(f"  s_mul_i32 s12, s6, {E3B}")
        a("  s_lshl_b32 s13, s4, 2")
        a("  s_add_u32 s13, s13, s7")
        a("  s_mul_i32 s13, s13, 2560")
        a("  s_add_u32 s12, s12, s13")
        a(f"  s_lshl_b32 s13, s{stile}, 9")
        a("  s_add_u32 s12, s12, s13")
        a(f"  s_add_u32 s12, s12, {E3}")
        a("  v_lshlrev_b32 v12, 5, v9")
        a("  v_lshl_add_u32 v12, v8, 4, v12")
        a("  v_add_u32 v12, s12, v12")
        a("  v_lshlrev_b32 v11, 5, v8")
        a("  v_mov_b32 v14, -2")
        a("  v_cmp_gt_u32 s[48:49], 16, v0")
        wait_lds(F_O, 1, 112, n=4, sleep=1)
        for w in range(4):
            a(f"  ds_read_b128 v[{80+8*w}:{83+8*w}], v11 offset:{L_O+128*w}")
            a(f"  ds_read_b128 v[{84+8*w}:{87+8*w}], v11 offset:{L_O+128*w+16}")
        a("  s_waitcnt lgkmcnt(4)")
        for i in range(8):
            a(f"  v_add_f32 v{80+i}, v{80+i}, v{88+i}")
        a("  s_waitcnt lgkmcnt(0)")
        for i in range(8):
            a(f"  v_add_f32 v{96+i}, v{96+i}, v{104+i}")
        for i in range(8):
            a(f"  v_add_f32 v{80+i}, v{80+i}, v{96+i}")
        for i in range(4):
            a(f"  v_cvt_pk_bf16_f32 v{112+i}, v{80+2*i}, v{81+2*i}")
        for x in range(8):
            a(f"  v_mfma_f32_16x16x32_bf16 v[{116+4*x}:{119+4*x}], v[112:115], v[{48+4*x}:{51+4*x}], 0")
        for r in range(4):
            a(f"  v_cndmask_b32 v{80+r}, v{116+4*(4+r)}, v{116+4*r}, s[48:49]")
        for r in range(4):
            a(f"  v_min_u32 v{80+r}, v{80+r}, v14")
        a("  s_mov_b64 exec, 0xffffffff")
        a("  global_store_dwordx4 v12, v[80:83], s[36:37] sc1")
        a("  s_mov_b64 exec, -1")

    a("L_aux2:")
    for r in range(4):
        a(f"  v_mov_b32 v{16+r}, -1")
    a("  v_lshlrev_b32 v3, 4, v0")
    a("  s_lshl_b32 s12, s11, 10")
    a(f"  s_add_u32 s12, s12, {E1Q}")
    a("  v_add_u32 v4, s12, v3")
    a("  global_store_dwordx4 v4, v[16:19], s[36:37] sc1")
    a("  s_lshl_b32 s12, s6, 5")
    a("  s_add_u32 s12, s12, s4")
    a("  s_lshl_b32 s13, s12, 12")
    a("  s_lshl_b32 s14, s7, 10")
    a("  s_add_u32 s13, s13, s14")
    a(f"  s_add_u32 s13, s13, {E2S}")
    a("  v_add_u32 v5, s13, v3")
    a("  global_store_dwordx4 v5, v[16:19], s[36:37] sc1")
    a(f"  s_mul_i32 s13, s6, {E3B}")
    a("  s_lshl_b32 s14, s4, 2")
    a("  s_add_u32 s14, s14, s7")
    a("  s_mul_i32 s14, s14, 2560")
    a("  s_add_u32 s13, s13, s14")
    a(f"  s_add_u32 s13, s13, {E3}")
    a("  v_add_u32 v6, s13, v3")
    a("  global_store_dwordx4 v6, v[16:19], s[36:37] sc1")
    a("  global_store_dwordx4 v6, v[16:19], s[36:37] offset:1024 sc1")
    a("  s_mov_b64 exec, 0xffffffff")
    a("  global_store_dwordx4 v6, v[16:19], s[36:37] offset:2048 sc1")
    a("  s_lshl_b32 s13, s11, 9")
    a(f"  s_add_u32 s13, s13, {E1H}")
    a("  v_add_u32 v7, s13, v3")
    a("  global_store_dwordx4 v7, v[16:19], s[36:37] sc1")
    a("  s_lshl_b32 s13, s12, 7")
    a("  s_lshl_b32 s14, s7, 5")
    a("  s_add_u32 s13, s13, s14")
    a(f"  s_add_u32 s13, s13, {E2T}")
    a("  v_add_u32 v8, s13, v3")
    a("  s_mov_b64 exec, 3")
    a("  global_store_dwordx4 v8, v[16:19], s[36:37] sc1")
    a("  s_mov_b64 exec, -1")
    a("  s_cmp_ge_u32 s5, 5")
    a("  s_cbranch_scc1 L_noe3f")
    a("  v_lshrrev_b32 v9, 5, v0")
    a(f"  v_mul_u32_u24 v9, {E3B}, v9")
    a("  v_and_b32 v10, 31, v0")
    a("  v_lshl_add_u32 v9, v10, 4, v9")
    a("  s_add_u32 s13, s4, 128")
    a("  s_mul_i32 s13, s13, 2560")
    a("  s_lshl_b32 s14, s5, 9")
    a("  s_add_u32 s13, s13, s14")
    a(f"  s_add_u32 s13, s13, {E3}")
    a("  v_add_u32 v9, s13, v9")
    a("  global_store_dwordx4 v9, v[16:19], s[36:37] sc1")
    a("L_noe3f:")
    a("  s_waitcnt vmcnt(0)")
    set_lds_flag(F_CLR, 1, 2)
    a("  v_mov_b32 v3, s11")
    a("  s_mov_b64 exec, 1")
    a("  global_store_byte v3, v2, s[34:35] sc1")
    a("  s_mov_b64 exec, -1")
    stamp(1)
    a("  s_mov_b32 s10, 4")
    wo_issue(10)
    a("  s_waitcnt vmcnt(0)")
    wo_prep()
    stamp(2)
    wo_finish(10)
    stamp(3)
    stamp_flush()
    a("  s_endpgm")

    a("L_aux3:")
    a("  s_cmp_ge_u32 s5, 5")
    a("  s_cbranch_scc1 L_end")
    a("  s_mul_i32 s12, s4, 5")
    a("  s_add_u32 s12, s12, s5")
    a("  s_cmp_ge_u32 s12, 80")
    a("  s_cselect_b32 s13, 1, 0")
    a("  s_mul_i32 s14, s13, 80")
    a("  s_sub_u32 s14, s12, s14")
    a("  v_and_b32 v3, 1, v0")
    a("  v_lshrrev_b32 v4, 4, v0")
    a("  v_lshl_add_u32 v5, v3, 2, v4")
    a("  s_mul_i32 s15, s13, 640")
    a("  s_lshl_b32 s8, s14, 3")
    a("  s_add_u32 s15, s15, s8")
    a("  v_add_u32 v5, s15, v5")
    a("  v_lshlrev_b32 v5, 1, v5")
    a("  global_load_ushort v6, v5, s[16:17]")
    a("  v_lshrrev_b32 v7, 1, v0")
    a("  v_mul_u32_u24 v8, 2560, v7")
    a("  v_lshl_add_u32 v8, v3, 4, v8")
    a(f"  s_mul_i32 s15, s13, {E3B}")
    a("  s_lshl_b32 s8, s14, 5")
    a("  s_add_u32 s15, s15, s8")
    a(f"  s_add_u32 s15, s15, {E3}")
    a("  v_add_u32 v8, s15, v8")
    for i in range(1, 5):
        a(f"  v_add_u32 v{8+i}, {81920*i}, v8")
    a("  v_cmp_gt_u32 s[48:49], 27, v7")
    wait_lds(F_O, 1, 16, n=4, sleep=4)
    L = lab("af")
    D = lab("afd")
    a("  v_lshlrev_b32 v13, 2, v0")
    a("  s_mov_b32 s9, 0")
    a(f"{L}:")
    a("  global_load_dword v16, v13, s[34:35] sc1")
    a("  s_waitcnt vmcnt(0)")
    a("  v_cmp_ne_u32 vcc, 0x01010101, v16")
    a(f"  s_cbranch_vccz {D}")
    a("  s_add_u32 s9, s9, 1")
    a(f"  s_cmp_lt_u32 s9, {SPIN_G}")
    a(f"  s_cbranch_scc1 {L}")
    a(f"{D}:")
    stamp(1)
    L = lab("rp")
    D = lab("rpd")
    a("  s_mov_b32 s9, 0")
    a(f"{L}:")
    for i in range(5):
        a(f"  global_load_dwordx4 v[{16+4*i}:{19+4*i}], v{8+i}, s[36:37] sc1")
    a("  s_waitcnt vmcnt(0)")
    for r in range(4):
        a(f"  v_cndmask_b32 v{32+r}, 0, v{32+r}, s[48:49]")
    a("  v_max3_u32 v36, v16, v17, v18")
    a("  v_max3_u32 v37, v19, v20, v21")
    a("  v_max3_u32 v38, v22, v23, v24")
    a("  v_max3_u32 v39, v25, v26, v27")
    a("  v_max3_u32 v36, v36, v28, v29")
    a("  v_max3_u32 v37, v37, v30, v31")
    a("  v_max3_u32 v38, v38, v32, v33")
    a("  v_max3_u32 v39, v39, v34, v35")
    a("  v_max3_u32 v36, v36, v37, v38")
    a("  v_max_u32 v36, v36, v39")
    a("  v_cmp_eq_u32 vcc, -1, v36")
    a(f"  s_cbranch_vccz {D}")
    a("  s_add_u32 s9, s9, 1")
    a(f"  s_cmp_lt_u32 s9, {SPIN_G}")
    a(f"  s_cbranch_scc1 {L}")
    a(f"{D}:")
    stamp(2)
    for r in range(4):
        a(f"  v_add_f32 v{16+r}, v{16+r}, v{20+r}")
        a(f"  v_add_f32 v{24+r}, v{24+r}, v{28+r}")
    for r in range(4):
        a(f"  v_add_f32 v{16+r}, v{16+r}, v{24+r}")
    a("  v_permlane32_swap_b32 v16, v18")
    a("  v_permlane32_swap_b32 v17, v19")
    a("  v_permlane32_swap_b32 v32, v34")
    a("  v_permlane32_swap_b32 v33, v35")
    a("  v_add_f32 v16, v16, v18")
    a("  v_add_f32 v17, v17, v19")
    a("  v_add_f32 v32, v32, v34")
    a("  v_add_f32 v33, v33, v35")
    a("  v_permlane16_swap_b32 v16, v17")
    a("  v_permlane16_swap_b32 v32, v33")
    a("  v_add_f32 v16, v16, v17")
    a("  v_add_f32 v32, v32, v33")
    for r in (8, 4, 2):
        a(f"  v_add_f32_dpp v16, v16, v16 row_ror:{r} row_mask:0xf bank_mask:0xf")
        a(f"  v_add_f32_dpp v32, v32, v32 row_ror:{r} row_mask:0xf bank_mask:0xf")
    rne(16, 16)
    rne(32, 32)
    a("  v_mul_f32 v33, 0xbfb8aa3b, v32")
    a("  v_exp_f32 v33, v33")
    a("  v_add_f32 v33, 1.0, v33")
    a("  v_rcp_f32 v34, v33")
    a("  v_mul_f32 v35, v32, v34")
    a("  v_fma_f32 v36, -v35, v33, v32")
    a("  v_fmac_f32 v35, v36, v34")
    rne(35, 35)
    a("  v_mul_f32 v16, v16, v35")
    rne(16, 16)
    a("  v_lshlrev_b32 v6, 16, v6")
    a("  v_add_f32 v16, v6, v16")
    a("  v_cvt_pk_bf16_f32 v16, v16, v16")
    a("  s_mov_b32 exec_lo, 0x00030003")
    a("  s_mov_b32 exec_hi, 0x00030003")
    a("  global_store_short v5, v16, s[32:33] sc1")
    a("  s_mov_b64 exec, -1")
    stamp(3)
    stamp_flush()
    a("  s_endpgm")

    a("L_kwave:")
    if cfg.prio:
        a("  s_setprio 2")
    a("  s_sub_u32 s10, s3, 4")
    srd(40, 18, 0x8000000)
    a("  s_lshl_b32 s12, s6, 26")
    a("  s_lshl_b32 s13, s4, 21")
    a("  s_add_u32 s12, s12, s13")
    a("  s_lshl_b32 s13, s7, 17")
    a("  s_add_u32 s12, s12, s13")
    a("  s_lshl_b32 s13, s10, 15")
    a("  s_add_u32 s12, s12, s13")
    a(f"  s_add_u32 s12, s12, {6144*256}")
    a("  v_lshlrev_b32 v3, 4, v0")
    for t in range(32):
        a(f"  buffer_load_dwordx4 v[{16+4*t}:{19+4*t}], v3, s[40:43], s12 offen offset:{(t&3)*1024} {cfg.nt_kv}")
        if (t & 3) == 3 and t < 31:
            a("  s_add_u32 s12, s12, 4096")
    stamp(1)
    a("  v_and_b32 v4, 15, v0")
    a("  v_lshlrev_b32 v5, 4, v4")
    wait_lds(F_Q, 1, 6)
    a(f"  ds_read_b128 v[144:147], v5 offset:{L_Q}")
    a("  s_waitcnt lgkmcnt(0)")
    stamp(2)
    R = lambda t: 16 + 4 * t
    for G in range(8):
        t0 = 4 * G
        a(f"  s_waitcnt vmcnt({28-4*G})")
        for k in range(4):
            for t in range(t0, t0 + 4):
                c = "0" if k == 0 else f"v{R(t)}"
                a(f"  v_dot2_f32_bf16 v{R(t)}, v{R(t)+k}, v{144+k}, {c}")
        for t in (t0, t0 + 2):
            a(f"  v_add_f32_dpp v{R(t)}, v{R(t)}, v{R(t)} row_ror:8 row_mask:0xf bank_mask:0x3")
            a(f"  v_add_f32_dpp v{R(t)}, v{R(t+1)}, v{R(t+1)} row_ror:8 row_mask:0xf bank_mask:0xc")
        a(f"  v_add_f32_dpp v{R(t0)}, v{R(t0)}, v{R(t0)} row_half_mirror row_mask:0xf bank_mask:0x5")
        a(f"  v_add_f32_dpp v{R(t0)}, v{R(t0+2)}, v{R(t0+2)} row_half_mirror row_mask:0xf bank_mask:0xa")
    a("  v_and_b32 v6, 2, v0")
    a("  v_cmp_ne_u32 s[48:49], 0, v6")
    a("  v_and_b32 v6, 1, v0")
    a("  v_cmp_ne_u32 s[50:51], 0, v6")
    for i in range(4):
        x, y = R(8 * i), R(8 * i + 4)
        a(f"  v_cndmask_b32 v{x+1}, v{x}, v{y}, s[48:49]")
        a(f"  v_cndmask_b32 v{x+2}, v{y}, v{x}, s[48:49]")
    for i in range(4):
        x = R(8 * i)
        a(f"  v_add_f32_dpp v{x}, v{x+2}, v{x+1} quad_perm:[2,3,0,1] row_mask:0xf bank_mask:0xf")
    for i in range(2):
        x, y = R(16 * i), R(16 * i + 8)
        a(f"  v_cndmask_b32 v{x+1}, v{x}, v{y}, s[50:51]")
        a(f"  v_cndmask_b32 v{x+2}, v{y}, v{x}, s[50:51]")
    for i in range(2):
        x = R(16 * i)
        a(f"  v_add_f32_dpp v{x}, v{x+2}, v{x+1} quad_perm:[1,0,3,2] row_mask:0xf bank_mask:0xf")
    S0, S1 = R(0), R(16)
    a(f"  v_cvt_pk_bf16_f32 v6, v{S0}, v{S1}")
    a("  v_lshlrev_b32 v7, 16, v6")
    a("  v_and_b32 v8, 0xffff0000, v6")
    a("  v_mul_f32 v7, 0x3db504f3, v7")
    a("  v_mul_f32 v8, 0x3db504f3, v8")
    a("  v_cvt_pk_bf16_f32 v6, v7, v8")
    a("  v_lshlrev_b32 v7, 16, v6")
    a("  v_and_b32 v8, 0xffff0000, v6")
    a("  v_max_f32 v9, v7, v8")
    wave_allreduce_row(9, "v_max_f32")
    a("  v_mov_b32 v10, v9")
    a("  v_permlane16_swap_b32 v9, v10")
    a("  v_max_f32 v9, v9, v10")
    a("  v_mov_b32 v10, v9")
    a("  v_permlane32_swap_b32 v9, v10")
    a("  v_max_f32 v9, v9, v10")
    a("  v_sub_f32 v7, v7, v9")
    a("  v_sub_f32 v8, v8, v9")
    a("  v_mul_f32 v7, 0x3fb8aa3b, v7")
    a("  v_mul_f32 v8, 0x3fb8aa3b, v8")
    a("  v_exp_f32 v7, v7")
    a("  v_exp_f32 v8, v8")
    a("  v_add_f32 v10, v7, v8")
    wave_allreduce_row(10)
    a("  v_mov_b32 v11, v10")
    a("  v_permlane16_swap_b32 v10, v11")
    a("  v_add_f32 v10, v10, v11")
    a("  v_mov_b32 v11, v10")
    a("  v_permlane32_swap_b32 v10, v11")
    a("  v_add_f32 v10, v10, v11")
    a("  v_bfrev_b32 v11, v4")
    a("  v_lshrrev_b32 v11, 28, v11")
    a("  v_lshrrev_b32 v12, 4, v0")
    a("  v_lshl_add_u32 v11, v11, 2, v12")
    a("  v_lshlrev_b32 v11, 2, v11")
    a("  s_lshl_b32 s12, s6, 5")
    a("  s_add_u32 s12, s12, s4")
    a("  s_lshl_b32 s13, s7, 2")
    a("  s_add_u32 s13, s13, s10")
    a("  s_lshl_b32 s14, s12, 12")
    a("  s_lshl_b32 s15, s13, 8")
    a("  s_add_u32 s14, s14, s15")
    a(f"  s_add_u32 s14, s14, {E2S}")
    a("  v_add_u32 v11, s14, v11")
    a("  s_lshl_b32 s14, s12, 7")
    a("  s_lshl_b32 s15, s13, 3")
    a("  s_add_u32 s14, s14, s15")
    a(f"  s_add_u32 s14, s14, {E2T}")
    a("  v_mov_b32 v12, s14")
    a("  v_mov_b32 v14, -2")
    a("  v_min_u32 v6, v6, v14")
    a("  v_min_u32 v150, v9, v14")
    a("  v_min_u32 v151, v10, v14")
    wait_lds(F_CLR, 1, 13, sleep=0)
    a("  global_store_dword v11, v6, s[36:37] sc1")
    a("  s_mov_b64 exec, 1")
    a("  global_store_dwordx2 v12, v[150:151], s[36:37] sc1")
    a("  s_mov_b64 exec, -1")
    stamp(3)
    wo_issue(10)
    a("  s_lshl_b32 s12, s6, 5")
    a("  s_add_u32 s12, s12, s4")
    a("  s_lshl_b32 s14, s12, 12")
    a("  s_lshl_b32 s15, s10, 10")
    a("  s_add_u32 s14, s14, s15")
    a(f"  s_add_u32 s14, s14, {E2S}")
    a("  v_lshl_add_u32 v11, v0, 4, s14")
    a("  s_lshl_b32 s14, s12, 7")
    a(f"  s_add_u32 s14, s14, {E2T}")
    a("  v_lshl_add_u32 v12, v4, 3, s14")
    L = lab("sp")
    D = lab("spd")
    a("  s_mov_b32 s9, 0")
    a(f"{L}:")
    a("  global_load_dwordx4 v[80:83], v11, s[36:37] sc1")
    a("  global_load_dwordx2 v[84:85], v12, s[36:37] sc1")
    a("  s_waitcnt vmcnt(0)")
    a("  v_max3_u32 v86, v80, v81, v82")
    a("  v_max3_u32 v87, v83, v84, v85")
    a("  v_max_u32 v86, v86, v87")
    a("  v_cmp_eq_u32 vcc, -1, v86")
    a(f"  s_cbranch_vccz {D}")
    a("  s_add_u32 s9, s9, 1")
    a(f"  s_cmp_lt_u32 s9, {SPIN_G}")
    a(f"  s_cbranch_scc1 {L}")
    a(f"{D}:")
    stamp(4)
    a("  v_mov_b32 v86, v84")
    wave_allreduce_row(86, "v_max_f32")
    a("  v_sub_f32 v87, v84, v86")
    a("  v_mul_f32 v87, 0x3fb8aa3b, v87")
    a("  v_exp_f32 v87, v87")
    a("  v_mul_f32 v87, v87, v85")
    wave_allreduce_row(87)
    a("  v_rcp_f32 v88, v87")
    a("  v_fma_f32 v89, -v87, v88, 1.0")
    a("  v_fmac_f32 v88, v89, v88")
    for r in range(4):
        a(f"  v_lshlrev_b32 v{90+2*r}, 16, v{80+r}")
        a(f"  v_and_b32 v{91+2*r}, 0xffff0000, v{80+r}")
    for i in range(8):
        a(f"  v_sub_f32 v{90+i}, v{90+i}, v86")
    for i in range(8):
        a(f"  v_mul_f32 v{90+i}, 0x3fb8aa3b, v{90+i}")
    for i in range(8):
        a(f"  v_exp_f32 v{90+i}, v{90+i}")
    for i in range(8):
        a(f"  v_mul_f32 v{90+i}, v{90+i}, v88")
    for r in range(4):
        a(f"  v_cvt_pk_bf16_f32 v{80+r}, v{90+2*r}, v{91+2*r}")
    a("  v_and_b32 v13, 3, v0")
    a("  v_lshlrev_b32 v13, 8, v13")
    a("  v_lshrrev_b32 v14, 2, v0")
    a("  v_lshl_add_u32 v13, v14, 2, v13")
    a("  s_lshl_b32 s12, s10, 10")
    a("  v_add_u32 v13, s12, v13")
    for r in range(4):
        a(f"  ds_write_b32 v13, v{80+r} offset:{L_P+64*r}")
    a("  s_lshl_b32 s12, s10, 2")
    a("  v_mov_b32 v13, s12")
    a(f"  ds_write_b32 v13, v2 offset:{F_P}")
    stamp(5)
    wo_prep()
    wo_finish(10)
    stamp(6)
    stamp_flush()
    a("  s_endpgm")

    a("L_vwave:")
    if cfg.prio:
        a("  s_setprio 0")
    a("  s_sub_u32 s10, s3, 8")
    srd(40, 20, 0x8000000)
    a("  s_lshl_b32 s12, s6, 26")
    a("  s_lshl_b32 s13, s4, 21")
    a("  s_add_u32 s12, s12, s13")
    a("  s_lshl_b32 s13, s10, 17")
    a("  s_add_u32 s12, s12, s13")
    a("  s_lshl_b32 s13, s7, 6")
    a("  s_add_u32 s12, s12, s13")
    a(f"  s_add_u32 s12, s12, {6144*256}")
    a("  v_lshrrev_b32 v3, 2, v0")
    a("  v_and_b32 v4, 3, v0")
    a("  v_lshlrev_b32 v5, 8, v3")
    a("  v_lshl_add_u32 v5, v4, 4, v5")
    for i in range(16):
        off = (i >> 2) * 32768 + (i & 3) * 4096
        a(f"  s_add_u32 s13, s12, {off}")
        a(f"  s_add_u32 s14, s12, {off+16384}")
        a(f"  buffer_load_dwordx4 v[{16+8*i}:{19+8*i}], v5, s[40:43], s13 offen {cfg.nt_kv}")
        a(f"  buffer_load_dwordx4 v[{20+8*i}:{23+8*i}], v5, s[40:43], s14 offen {cfg.nt_kv}")
    stamp(1)
    a("  s_mov_b32 s14, 0x05040100")
    a("  s_mov_b32 s15, 0x07060302")
    a("  s_lshl_b32 s12, s10, 2")
    a("  v_mov_b32 v6, s12")
    L = lab("wp")
    D = lab("wpd")
    a("  s_mov_b32 s9, 0")
    a(f"{L}:")
    a(f"  ds_read_b32 v7, v6 offset:{F_P}")
    a("  s_waitcnt lgkmcnt(0)")
    a("  v_readfirstlane_b32 s8, v7")
    a("  s_cmp_lg_u32 s8, 0")
    a(f"  s_cbranch_scc1 {D}")
    a("  s_sleep 2")
    a("  s_add_u32 s9, s9, 1")
    a(f"  s_cmp_lt_u32 s9, {SPIN_L}")
    a(f"  s_cbranch_scc1 {L}")
    a(f"{D}:")
    a("  s_lshl_b32 s12, s10, 10")
    a("  v_lshlrev_b32 v6, 6, v3")
    a("  v_add_u32 v6, s12, v6")
    for i in range(4):
        a(f"  ds_read_b128 v[{144+4*i}:{147+4*i}], v6 offset:{L_P+16*i}")
    for i in range(8):
        a(f"  v_mov_b32 v{8+i}, 0")
    a("  s_waitcnt lgkmcnt(0)")
    stamp(2)
    T = 160
    for i in range(16):
        A, B = 16 + 8 * i, 20 + 8 * i
        a(f"  s_waitcnt vmcnt({30-2*i})")
        for d in range(4):
            t0, t1 = T + 2 * (d % 3), T + 2 * (d % 3) + 1
            a(f"  v_perm_b32 v{t0}, v{B+d}, v{A+d}, s14")
            a(f"  v_perm_b32 v{t1}, v{B+d}, v{A+d}, s15")
            a(f"  v_dot2c_f32_bf16 v{8+2*d}, v{t0}, v{144+i}")
            a(f"  v_dot2c_f32_bf16 v{9+2*d}, v{t1}, v{144+i}")
    stamp(3)
    for r in range(4):
        a(f"  v_permlane32_swap_b32 v{8+r}, v{12+r}")
    for r in range(4):
        a(f"  v_add_f32 v{8+r}, v{8+r}, v{12+r}")
    a("  v_permlane16_swap_b32 v8, v10")
    a("  v_permlane16_swap_b32 v9, v11")
    a("  v_add_f32 v8, v8, v10")
    a("  v_add_f32 v9, v9, v11")
    for r in (8, 4):
        a(f"  v_add_f32_dpp v8, v8, v8 row_ror:{r} row_mask:0xf bank_mask:0xf")
        a(f"  v_add_f32_dpp v9, v9, v9 row_ror:{r} row_mask:0xf bank_mask:0xf")
    a("  v_lshlrev_b32 v6, 5, v4")
    a("  v_lshrrev_b32 v7, 4, v0")
    a("  v_lshl_add_u32 v6, v7, 3, v6")
    a("  s_lshl_b32 s12, s10, 7")
    a("  v_add_u32 v6, s12, v6")
    a("  s_mov_b32 exec_lo, 0x000f000f")
    a("  s_mov_b32 exec_hi, 0x000f000f")
    a(f"  ds_write_b64 v6, v[8:9] offset:{L_O}")
    a("  s_mov_b64 exec, -1")
    a("  s_lshl_b32 s12, s10, 2")
    a("  v_mov_b32 v7, s12")
    a(f"  ds_write_b32 v7, v2 offset:{F_O}")
    stamp(4)
    stamp_flush()
    a("L_end:")
    a("  s_endpgm")
    a('.section .rodata,"a"')
    a(".p2align 6")
    a(f".amdhsa_kernel {NAME}_kernel")
    a("  .amdhsa_next_free_vgpr 168")
    a("  .amdhsa_next_free_sgpr 96")
    a("  .amdhsa_accum_offset 168")
    a("  .amdhsa_group_segment_fixed_size 0")
    a("  .amdhsa_kernarg_size 88")
    a("  .amdhsa_user_sgpr_count 2")
    a("  .amdhsa_user_sgpr_kernarg_segment_ptr 1")
    a("  .amdhsa_system_sgpr_workgroup_id_x 1")
    a(".end_amdhsa_kernel")
    return a.resolve() + "\n"


if __name__ == "__main__":
    out = sys.argv[1] if len(sys.argv) > 1 else f"cdna_kernels/{NAME}.s"

    class C(Cfg):
        pass
    for kv in sys.argv[2:]:
        k, v = kv.split("=")
        cur = getattr(C, k)
        if isinstance(cur, bool):
            v = v in ("1", "True", "true")
        elif isinstance(cur, int):
            v = int(v)
        setattr(C, k, v)
    open(out, "w").write(gen(C))
```

```python
import sys, os
sys.path.insert(0, "work")
from asmlib import Asm

NAME = "recurrent_scan__sliding_block_cached__dense_activation_relu__decode"

E1Q = 0x0
E1H = 0x40000
E2S = 0x60000
E2T = 0xA0000
E3 = 0xB0000
E3B = 160 * 2560
TS = 0x400000

F_Q, F_CLR, F_P, F_O, F_KI = 0, 4, 16, 32, 48
L_Q, L_O, L_P, L_XN0, L_XN1, L_HB = 256, 512, 1024, 5120, 5888, 6656
LDS_BYTES = 8192

SPIN_G = 1 << 17
SPIN_L = 1 << 21


class Cfg:
    nt_kv = "nt"
    nt_w = "nt"
    nt_wo = "nt"
    stamps = False
    prio = True
    kwin = 6
    vwin = 6
    vgate = True
    spin_g = 1 << 17
    vgate_all = False
    vfake = 0
    nowo = False
    cpf = False


def gen(cfg=Cfg):
    a = Asm()
    uid = [0]

    def lab(p):
        uid[0] += 1
        return f"L_{p}_{uid[0]}"

    def stamp(i):
        if not cfg.stamps:
            return
        a("  s_memrealtime s[62:63]")
        a("  s_waitcnt lgkmcnt(0)")
        a(f"  v_writelane_b32 v167, s62, {i}")

    def stamp_flush():
        if not cfg.stamps:
            return
        a("  s_mul_i32 s62, s2, 12")
        a("  s_add_u32 s62, s62, s3")
        a("  s_lshl_b32 s62, s62, 6")
        a(f"  s_add_u32 s62, s62, {TS}")
        a("  v_lshlrev_b32 v166, 2, v0")
        a("  v_add_u32 v166, s62, v166")
        a("  s_mov_b64 exec, 0xffff")
        a("  global_store_dword v166, v167, s[36:37]")
        a("  s_mov_b64 exec, -1")

    def srd(base, lo, size):
        a(f"  s_mov_b32 s{base}, s{lo}")
        a(f"  s_and_b32 s{base+1}, s{lo+1}, 0xffff")
        a(f"  s_mov_b32 s{base+2}, {size}")
        a(f"  s_mov_b32 s{base+3}, 0x20000")

    def wait_lds(off, vz, vt, n=1, sleep=2):
        L = lab("wl")
        D = lab("wld")
        a("  s_mov_b32 s9, 0")
        a(f"{L}:")
        if n == 1:
            a(f"  ds_read_b32 v{vt}, v{vz} offset:{off}")
            a("  s_waitcnt lgkmcnt(0)")
        else:
            a(f"  ds_read_b128 v[{vt}:{vt+3}], v{vz} offset:{off}")
            a("  s_waitcnt lgkmcnt(0)")
            a(f"  v_and_b32 v{vt}, v{vt}, v{vt+1}")
            a(f"  v_and_b32 v{vt+2}, v{vt+2}, v{vt+3}")
            a(f"  v_and_b32 v{vt}, v{vt}, v{vt+2}")
        a(f"  v_readfirstlane_b32 s8, v{vt}")
        a("  s_cmp_lg_u32 s8, 0")
        a(f"  s_cbranch_scc1 {D}")
        if sleep:
            a(f"  s_sleep {sleep}")
        a("  s_add_u32 s9, s9, 1")
        a(f"  s_cmp_lt_u32 s9, {SPIN_L}")
        a(f"  s_cbranch_scc1 {L}")
        a(f"{D}:")

    def set_lds_flag(off, vz, vone):
        a(f"  ds_write_b32 v{vz}, v{vone} offset:{off}")

    def wave_allreduce_row(v, op="v_add_f32"):
        for r in (8, 4, 2, 1):
            a(f"  {op}_dpp v{v}, v{v}, v{v} row_ror:{r} row_mask:0xf bank_mask:0xf")

    def rne(dst, src):
        a(f"  v_cvt_pk_bf16_f32 v{dst}, v{src}, v{src}")
        a(f"  v_lshlrev_b32 v{dst}, 16, v{dst}")

    a(f"; @launch grid=(256,1,1) block=(768,1,1) lds={LDS_BYTES}")
    a('.amdgcn_target "amdgcn-amd-amdhsa--gfx950"')
    a(".text")
    a(f".globl {NAME}_kernel")
    a(".p2align 8")
    a(f".type {NAME}_kernel,@function")
    a(f"{NAME}_kernel:")
    a("  s_cmp_ge_u32 s2, 256")
    a("  s_cbranch_scc1 L_end")
    a("  s_load_dwordx16 s[16:31], s[0:1], 0")
    a("  s_load_dwordx4 s[32:35], s[0:1], 64")
    a("  s_load_dwordx2 s[36:37], s[0:1], 80")
    a("  v_lshrrev_b32 v1, 6, v0")
    a("  v_and_b32 v0, 63, v0")
    a("  v_readfirstlane_b32 s3, v1")
    a("  s_and_b32 s8, s2, 7")
    a("  s_lshr_b32 s9, s2, 3")
    a("  s_lshr_b32 s10, s9, 3")
    a("  s_lshl_b32 s4, s8, 2")
    a("  s_add_u32 s4, s4, s10")
    a("  s_and_b32 s5, s9, 7")
    a("  s_lshr_b32 s6, s5, 2")
    a("  s_and_b32 s7, s5, 3")
    a("  s_lshl_b32 s11, s4, 3")
    a("  s_add_u32 s11, s11, s5")
    a("  v_mov_b32 v1, 0")
    a("  v_mov_b32 v2, 1")
    a("  s_cmp_lg_u32 s3, 0")
    a("  s_cbranch_scc1 L_noinit")
    a("  v_lshlrev_b32 v3, 2, v0")
    a("  ds_write_b32 v3, v1")
    a("  s_waitcnt lgkmcnt(0)")
    a("L_noinit:")
    a("  s_barrier")
    if cfg.stamps:
        a("  v_mov_b32 v167, 0")
    stamp(0)
    a("  s_waitcnt lgkmcnt(0)")
    a("  s_cmp_ge_u32 s3, 8")
    a("  s_cbranch_scc1 L_vwave")
    a("  s_cmp_ge_u32 s3, 4")
    a("  s_cbranch_scc1 L_kwave")
    if cfg.prio:
        a("  s_setprio 3")
    a("  s_cmp_eq_u32 s3, 1")
    a("  s_cbranch_scc1 L_aux1")
    a("  s_cmp_eq_u32 s3, 2")
    a("  s_cbranch_scc1 L_aux2")
    a("  s_cmp_eq_u32 s3, 3")
    a("  s_cbranch_scc1 L_aux3")

    def ln_issue():
        a("  v_lshrrev_b32 v3, 5, v0")
        a("  v_and_b32 v4, 31, v0")
        a("  v_mul_u32_u24 v5, 1280, v3")
        a("  v_lshl_add_u32 v6, v4, 3, v5")
        for i in range(5):
            a(f"  global_load_dwordx2 v[{20+2*i}:{21+2*i}], v6, s[16:17] offset:{256*i}")
        a("  v_min_u32 v7, 19, v4")
        a("  v_lshl_add_u32 v7, v7, 3, v5")
        a("  s_mul_i32 s8, s5, 160")
        a("  v_add_u32 v7, s8, v7")
        a("  global_load_dwordx2 v[30:31], v7, s[16:17]")

    def ln_compute(nafter, xn_off):
        X = 120
        a(f"  s_waitcnt vmcnt({nafter+1})")
        for i in range(10):
            a(f"  v_lshlrev_b32 v{X+2*i}, 16, v{20+i}")
            a(f"  v_and_b32 v{X+2*i+1}, 0xffff0000, v{20+i}")
        for i in range(10):
            a(f"  v_add_f32 v{140+i}, v{X+2*i}, v{X+2*i+1}")
        for i in range(5):
            a(f"  v_add_f32 v{140+i}, v{140+i}, v{145+i}")
        a("  v_add_f32 v140, v140, v141")
        a("  v_add_f32 v142, v142, v143")
        a("  v_add_f32 v140, v140, v144")
        a("  v_add_f32 v140, v140, v142")

        def half_allreduce(v, t):
            wave_allreduce_row(v)
            a(f"  v_mov_b32 v{t}, v{v}")
            a(f"  v_permlane16_swap_b32 v{v}, v{t}")
            a(f"  v_add_f32 v{v}, v{v}, v{t}")

        def div640(v, t, e):
            a(f"  v_mul_f32 v{t}, 0x3acccccd, v{v}")
            a(f"  v_fma_f32 v{e}, v{t}, s12, v{v}")
            a(f"  v_fmac_f32 v{t}, 0x3acccccd, v{e}")
            a(f"  v_mov_b32 v{v}, v{t}")

        a("  s_mov_b32 s12, 0xc4200000")
        half_allreduce(140, 141)
        div640(140, 141, 142)
        for i in range(20):
            a(f"  v_sub_f32 v{X+i}, v{X+i}, v140")
        a(f"  v_mul_f32 v141, v{X}, v{X}")
        a(f"  v_mul_f32 v142, v{X+1}, v{X+1}")
        for i in range(2, 20, 2):
            a(f"  v_fmac_f32 v141, v{X+i}, v{X+i}")
            a(f"  v_fmac_f32 v142, v{X+i+1}, v{X+i+1}")
        a("  v_add_f32 v141, v141, v142")
        half_allreduce(141, 142)
        div640(141, 142, 143)
        rne(140, 140)
        rne(141, 141)
        a("  v_add_f32 v141, 0x3727c5ac, v141")
        rne(141, 141)
        a("  v_sqrt_f32 v141, v141")
        rne(141, 141)
        a("  v_rcp_f32 v142, v141")
        a(f"  s_waitcnt vmcnt({nafter})")
        a("  v_lshlrev_b32 v144, 16, v30")
        a("  v_and_b32 v145, 0xffff0000, v30")
        a("  v_lshlrev_b32 v146, 16, v31")
        a("  v_and_b32 v147, 0xffff0000, v31")
        for i in range(4):
            a(f"  v_sub_f32 v{144+i}, v{144+i}, v140")
        for i in range(4):
            rne(144 + i, 144 + i)
        for i in range(4):
            a(f"  v_mul_f32 v{148+i}, v{144+i}, v142")
        for i in range(4):
            a(f"  v_fma_f32 v{152+i}, -v{148+i}, v141, v{144+i}")
        for i in range(4):
            a(f"  v_fmac_f32 v{148+i}, v{152+i}, v142")
        for i in range(4):
            a(f"  v_cvt_pk_bf16_f32 v{148+i}, v{148+i}, v{148+i}")
        a("  v_mul_u32_u24 v143, 320, v3")
        a("  v_lshl_add_u32 v143, v4, 2, v143")
        a("  s_mov_b32 exec_lo, 0xfffff")
        a("  s_mov_b32 exec_hi, 0xfffff")
        for g in range(4):
            a(f"  ds_write_b32 v143, v{148+g} offset:{xn_off+80*g}")
        a("  s_mov_b64 exec, -1")

    def const_masks(nm, base, vt):
        a(f"  v_and_b32 v{vt}, 1, v0")
        a(f"  v_lshlrev_b32 v{vt}, 4, v{vt}")
        a(f"  v_mov_b32 v{vt+1}, 0xffff")
        a(f"  v_lshlrev_b32 v{vt}, v{vt}, v{vt+1}")
        a(f"  v_bfe_u32 v{vt+1}, v0, 1, {2 if nm == 4 else 1}")
        for j in range(nm):
            a(f"  v_cmp_eq_u32 vcc, {j}, v{vt+1}")
            a(f"  v_cndmask_b32 v{base+j}, 0, v{vt}, vcc")

    def poll_group_flags(vt):
        L = lab("gf")
        D = lab("gfd")
        a("  s_lshl_b32 s8, s4, 3")
        a(f"  v_mov_b32 v{vt+2}, s8")
        a("  s_mov_b32 s9, 0")
        a(f"{L}:")
        a(f"  global_load_dwordx2 v[{vt}:{vt+1}], v{vt+2}, s[34:35] sc1")
        a("  s_waitcnt vmcnt(0)")
        a(f"  v_and_b32 v{vt}, v{vt}, v{vt+1}")
        a(f"  v_readfirstlane_b32 s8, v{vt}")
        a("  s_cmp_eq_u32 s8, 0x01010101")
        a(f"  s_cbranch_scc1 {D}")
        a("  s_add_u32 s9, s9, 1")
        a(f"  s_cmp_lt_u32 s9, {cfg.spin_g}")
        a(f"  s_cbranch_scc1 {L}")
        a(f"{D}:")

    a("L_aux0:")
    ln_issue()
    srd(40, 22, 640 * 8192)
    a("  v_lshrrev_b32 v8, 4, v0")
    a("  v_and_b32 v9, 15, v0")
    a("  v_lshlrev_b32 v10, 13, v8")
    a("  v_lshl_add_u32 v10, v9, 4, v10")
    a("  s_mul_i32 s12, s5, 80*8192")
    a("  s_lshl_b32 s13, s4, 8")
    a("  s_add_u32 s12, s12, s13")
    for t in range(20):
        a(f"  buffer_load_dwordx4 v[{40+4*t}:{43+4*t}], v10, s[40:43], s12 offen {cfg.nt_w}")
        if t < 19:
            a("  s_add_u32 s12, s12, 32768")
    const_masks(4, 156, 160)
    ln_compute(20, L_XN0)
    a("  v_bfe_u32 v11, v0, 3, 1")
    a("  v_lshl_add_u32 v11, v11, 2, v8")
    a("  v_mul_u32_u24 v11, 80, v11")
    a("  s_waitcnt lgkmcnt(0)")
    for i in range(5):
        a(f"  ds_read_b128 v[{120+4*i}:{123+4*i}], v11 offset:{L_XN0+16*i}")
    a("  s_waitcnt lgkmcnt(0)")
    stamp(1)
    for t in range(20):
        A = 140 + 4 * (t & 1)
        for j in range(4):
            a(f"  v_and_b32 v{A+j}, v{120+t}, v{156+j}")
        a(f"  s_waitcnt vmcnt({19-t})")
        c = "0" if t == 0 else "v[148:151]"
        a(f"  v_mfma_f32_16x16x32_bf16 v[148:151], v[{A}:{A+3}], v[{40+4*t}:{43+4*t}], {c}")
    a("  v_lshrrev_b32 v12, 1, v8")
    a("  v_lshlrev_b32 v12, 9, v12")
    a("  v_lshl_add_u32 v12, v9, 5, v12")
    a("  v_and_b32 v13, 1, v8")
    a("  v_lshl_add_u32 v12, v13, 4, v12")
    a("  s_lshl_b32 s12, s11, 10")
    a(f"  s_add_u32 s12, s12, {E1Q}")
    a("  v_add_u32 v12, s12, v12")
    wait_lds(F_CLR, 1, 14)
    a("  v_mov_b32 v14, -2")
    for r in range(4):
        a(f"  v_min_u32 v{148+r}, v{148+r}, v14")
    a("  global_store_dwordx4 v12, v[148:151], s[36:37] sc1")
    stamp(2)
    poll_group_flags(16)
    stamp(3)
    a("  s_lshl_b32 s12, s4, 13")
    a("  s_lshl_b32 s13, s6, 9")
    a("  s_add_u32 s12, s12, s13")
    a(f"  s_add_u32 s12, s12, {E1Q+4096}")
    a("  v_lshlrev_b32 v12, 3, v0")
    a("  v_add_u32 v12, s12, v12")
    L = lab("qp")
    D = lab("qpd")
    a("  s_mov_b32 s9, 0")
    a(f"{L}:")
    for p in range(8):
        a(f"  global_load_dwordx2 v[{20+2*p}:{21+2*p}], v12, s[36:37] offset:{p*1024-4096} sc1")
    a("  s_waitcnt vmcnt(0)")
    a("  v_max3_u32 v36, v20, v21, v22")
    a("  v_max3_u32 v37, v23, v24, v25")
    a("  v_max3_u32 v38, v26, v27, v28")
    a("  v_max3_u32 v39, v29, v30, v31")
    a("  v_max3_u32 v36, v36, v32, v33")
    a("  v_max3_u32 v37, v37, v34, v35")
    a("  v_max3_u32 v36, v36, v38, v39")
    a("  v_max_u32 v36, v36, v37")
    a("  v_cmp_eq_u32 vcc, -1, v36")
    a(f"  s_cbranch_vccz {D}")
    a("  s_add_u32 s9, s9, 1")
    a(f"  s_cmp_lt_u32 s9, {cfg.spin_g}")
    a(f"  s_cbranch_scc1 {L}")
    a(f"{D}:")
    for p in range(1, 8):
        a(f"  v_add_f32 v20, v20, v{20+2*p}")
        a(f"  v_add_f32 v21, v21, v{21+2*p}")
    a("  v_cvt_pk_bf16_f32 v20, v20, v21")
    a("  v_lshlrev_b32 v12, 2, v0")
    a(f"  ds_write_b32 v12, v20 offset:{L_Q}")
    set_lds_flag(F_Q, 1, 2)
    stamp(4)
    stamp_flush()
    a("  s_endpgm")

    a("L_aux1:")
    a("  s_cmp_ge_u32 s4, 27")
    a("  s_cbranch_scc1 L_end")
    ln_issue()
    srd(40, 28, 640 * 3456)
    a("  v_lshrrev_b32 v8, 4, v0")
    a("  v_and_b32 v9, 15, v0")
    a("  v_mul_u32_u24 v10, 3456, v8")
    a("  v_lshl_add_u32 v10, v9, 3, v10")
    a("  s_mul_i32 s12, s5, 80*3456")
    a("  s_lshl_b32 s13, s4, 7")
    a("  s_add_u32 s12, s12, s13")
    for t in range(20):
        a(f"  buffer_load_dwordx2 v[{40+2*t}:{41+2*t}], v10, s[40:43], s12 offen {cfg.nt_w}")
        if t < 19:
            a("  s_add_u32 s12, s12, 13824")
    const_masks(2, 156, 160)
    ln_compute(20, L_XN1)
    a("  v_bfe_u32 v11, v0, 2, 1")
    a("  v_lshl_add_u32 v11, v11, 2, v8")
    a("  v_mul_u32_u24 v11, 80, v11")
    a("  s_waitcnt lgkmcnt(0)")
    for i in range(5):
        a(f"  ds_read_b128 v[{120+4*i}:{123+4*i}], v11 offset:{L_XN1+16*i}")
    a("  s_waitcnt lgkmcnt(0)")
    for t in range(20):
        A = 140 + 2 * (t & 1)
        for j in range(2):
            a(f"  v_and_b32 v{A+j}, v{120+t}, v{156+j}")
        a(f"  s_waitcnt vmcnt({19-t})")
        c = "0" if t == 0 else "v[148:151]"
        a(f"  v_mfma_f32_16x16x16_bf16 v[148:151], v[{A}:{A+1}], v[{40+2*t}:{41+2*t}], {c}")
    a("  v_lshlrev_b32 v12, 8, v8")
    a("  v_lshl_add_u32 v12, v9, 4, v12")
    a("  s_lshl_b32 s12, s11, 9")
    a(f"  s_add_u32 s12, s12, {E1H}")
    a("  v_add_u32 v12, s12, v12")
    wait_lds(F_CLR, 1, 14)
    a("  v_mov_b32 v14, -2")
    for r in range(4):
        a(f"  v_min_u32 v{148+r}, v{148+r}, v14")
    a("  s_mov_b64 exec, 0xffffffff")
    a("  global_store_dwordx4 v12, v[148:151], s[36:37] sc1")
    a("  s_mov_b64 exec, -1")
    stamp(1)
    a("  s_cmp_ge_u32 s5, 5")
    a("  s_cbranch_scc1 L_aux1_done")
    srd(44, 30, 1728 * 1280)
    a("  v_mul_u32_u24 v10, 1280, v8")
    a("  v_lshl_add_u32 v10, v9, 4, v10")
    a("  s_mul_i32 s12, s4, 64*1280")
    a("  s_lshl_b32 s13, s5, 8")
    a("  s_add_u32 s12, s12, s13")
    for t in range(16):
        a(f"  buffer_load_dwordx4 v[{40+4*t}:{43+4*t}], v10, s[44:47], s12 offen {cfg.nt_w}")
        if t < 15:
            a("  s_add_u32 s12, s12, 5120")
    const_masks(4, 156, 160)
    poll_group_flags(16)
    a("  s_lshl_b32 s12, s4, 12")
    a(f"  s_add_u32 s12, s12, {E1H}")
    a("  v_lshlrev_b32 v12, 3, v0")
    a("  v_add_u32 v12, s12, v12")
    L = lab("hp")
    D = lab("hpd")
    a("  s_mov_b32 s9, 0")
    a(f"{L}:")
    for p in range(8):
        a(f"  global_load_dwordx2 v[{20+2*p}:{21+2*p}], v12, s[36:37] offset:{p*512} sc1")
    a("  s_waitcnt vmcnt(0)")
    a("  v_max3_u32 v36, v20, v21, v22")
    a("  v_max3_u32 v37, v23, v24, v25")
    a("  v_max3_u32 v38, v26, v27, v28")
    a("  v_max3_u32 v39, v29, v30, v31")
    a("  v_max3_u32 v36, v36, v32, v33")
    a("  v_max3_u32 v37, v37, v34, v35")
    a("  v_max3_u32 v36, v36, v38, v39")
    a("  v_max_u32 v36, v36, v37")
    a("  v_cmp_eq_u32 vcc, -1, v36")
    a(f"  s_cbranch_vccz {D}")
    a("  s_add_u32 s9, s9, 1")
    a(f"  s_cmp_lt_u32 s9, {cfg.spin_g}")
    a(f"  s_cbranch_scc1 {L}")
    a(f"{D}:")
    for p in range(1, 8):
        a(f"  v_add_f32 v20, v20, v{20+2*p}")
        a(f"  v_add_f32 v21, v21, v{21+2*p}")
    a("  v_max_f32 v20, 0, v20")
    a("  v_max_f32 v21, 0, v21")
    a("  v_cvt_pk_bf16_f32 v20, v20, v20")
    a("  v_cvt_pk_bf16_f32 v21, v21, v21")
    a("  v_lshrrev_b32 v12, 5, v0")
    a("  v_lshlrev_b32 v12, 8, v12")
    a("  v_and_b32 v13, 1, v0")
    a("  v_lshl_add_u32 v12, v13, 7, v12")
    a("  v_bfe_u32 v13, v0, 1, 4")
    a("  v_lshl_add_u32 v12, v13, 2, v12")
    a(f"  ds_write_b32 v12, v20 offset:{L_HB}")
    a(f"  ds_write_b32 v12, v21 offset:{L_HB+64}")
    a("  v_bfe_u32 v11, v0, 3, 1")
    a("  v_lshl_add_u32 v11, v11, 2, v8")
    a("  v_lshlrev_b32 v11, 6, v11")
    a("  s_waitcnt lgkmcnt(0)")
    for i in range(4):
        a(f"  ds_read_b128 v[{120+4*i}:{123+4*i}], v11 offset:{L_HB+16*i}")
    a("  s_waitcnt lgkmcnt(0)")
    for t in range(16):
        A = 140 + 4 * (t & 1)
        for j in range(4):
            a(f"  v_and_b32 v{A+j}, v{120+t}, v{156+j}")
        c = "0" if t == 0 else "v[148:151]"
        a(f"  v_mfma_f32_16x16x32_bf16 v[148:151], v[{A}:{A+3}], v[{40+4*t}:{43+4*t}], {c}")
    a("  v_lshrrev_b32 v12, 1, v8")
    a(f"  v_mul_u32_u24 v12, {E3B}, v12")
    a("  v_lshl_add_u32 v12, v9, 5, v12")
    a("  v_and_b32 v13, 1, v8")
    a("  v_lshl_add_u32 v12, v13, 4, v12")
    a("  s_add_u32 s12, s4, 128")
    a("  s_mul_i32 s12, s12, 2560")
    a("  s_lshl_b32 s13, s5, 9")
    a("  s_add_u32 s12, s12, s13")
    a(f"  s_add_u32 s12, s12, {E3}")
    a("  v_add_u32 v12, s12, v12")
    a("  v_mov_b32 v14, -2")
    for r in range(4):
        a(f"  v_min_u32 v{148+r}, v{148+r}, v14")
    a("  global_store_dwordx4 v12, v[148:151], s[36:37] sc1")
    a("L_aux1_done:")
    stamp(2)
    stamp_flush()
    a("  s_endpgm")

    def wo_issue(stile):
        srd(44, 24, 4096 * 1280)
        a("  v_lshrrev_b32 v8, 4, v0")
        a("  v_and_b32 v9, 15, v0")
        a("  v_mul_u32_u24 v10, 8*1280, v8")
        a("  v_lshl_add_u32 v10, v9, 4, v10")
        a("  s_lshl_b32 s12, s4, 7")
        a("  s_lshl_b32 s13, s7, 5")
        a("  s_add_u32 s12, s12, s13")
        a("  s_mul_i32 s12, s12, 1280")
        a(f"  s_lshl_b32 s13, s{stile}, 8")
        a("  s_add_u32 s12, s12, s13")
        a("  s_add_u32 s13, s12, 5120")
        for i in range(8):
            so = "s12" if i < 4 else "s13"
            a(f"  buffer_load_dwordx4 v[{16+4*i}:{19+4*i}], v10, s[44:47], {so} offen offset:{(i&3)*1280} {cfg.nt_wo}")

    def wo_prep():
        a("  s_mov_b32 s14, 0x05040100")
        a("  s_mov_b32 s15, 0x07060302")
        for d in range(4):
            for q in range(4):
                ev = 16 + 4 * (2 * q) + d
                od = 16 + 4 * (2 * q + 1) + d
                a(f"  v_perm_b32 v{48+4*(2*d)+q}, v{od}, v{ev}, s14")
                a(f"  v_perm_b32 v{48+4*(2*d+1)+q}, v{od}, v{ev}, s15")

    def wo_finish(stile):
        a(f"  s_mul_i32 s12, s6, {E3B}")
        a("  s_lshl_b32 s13, s4, 2")
        a("  s_add_u32 s13, s13, s7")
        a("  s_mul_i32 s13, s13, 2560")
        a("  s_add_u32 s12, s12, s13")
        a(f"  s_lshl_b32 s13, s{stile}, 9")
        a("  s_add_u32 s12, s12, s13")
        a(f"  s_add_u32 s12, s12, {E3}")
        a("  v_lshlrev_b32 v12, 5, v9")
        a("  v_lshl_add_u32 v12, v8, 4, v12")
        a("  v_add_u32 v12, s12, v12")
        a("  v_lshlrev_b32 v11, 5, v8")
        a("  v_mov_b32 v14, -2")
        a("  v_cmp_gt_u32 s[48:49], 16, v0")
        wait_lds(F_O, 1, 112, n=4, sleep=1)
        for w in range(4):
            a(f"  ds_read_b128 v[{80+8*w}:{83+8*w}], v11 offset:{L_O+128*w}")
            a(f"  ds_read_b128 v[{84+8*w}:{87+8*w}], v11 offset:{L_O+128*w+16}")
        a("  s_waitcnt lgkmcnt(4)")
        for i in range(8):
            a(f"  v_add_f32 v{80+i}, v{80+i}, v{88+i}")
        a("  s_waitcnt lgkmcnt(0)")
        for i in range(8):
            a(f"  v_add_f32 v{96+i}, v{96+i}, v{104+i}")
        for i in range(8):
            a(f"  v_add_f32 v{80+i}, v{80+i}, v{96+i}")
        for i in range(4):
            a(f"  v_cvt_pk_bf16_f32 v{112+i}, v{80+2*i}, v{81+2*i}")
        for x in range(8):
            a(f"  v_mfma_f32_16x16x32_bf16 v[{116+4*x}:{119+4*x}], v[112:115], v[{48+4*x}:{51+4*x}], 0")
        for r in range(4):
            a(f"  v_cndmask_b32 v{80+r}, v{116+4*(4+r)}, v{116+4*r}, s[48:49]")
        for r in range(4):
            a(f"  v_min_u32 v{80+r}, v{80+r}, v14")
        a("  s_mov_b64 exec, 0xffffffff")
        a("  global_store_dwordx4 v12, v[80:83], s[36:37] sc1")
        a("  s_mov_b64 exec, -1")

    a("L_aux2:")
    for r in range(4):
        a(f"  v_mov_b32 v{16+r}, -1")
    a("  v_lshlrev_b32 v3, 4, v0")
    a("  s_lshl_b32 s12, s11, 10")
    a(f"  s_add_u32 s12, s12, {E1Q}")
    a("  v_add_u32 v4, s12, v3")
    a("  global_store_dwordx4 v4, v[16:19], s[36:37] sc1")
    a("  s_lshl_b32 s12, s6, 5")
    a("  s_add_u32 s12, s12, s4")
    a("  s_lshl_b32 s13, s12, 12")
    a("  s_lshl_b32 s14, s7, 10")
    a("  s_add_u32 s13, s13, s14")
    a(f"  s_add_u32 s13, s13, {E2S}")
    a("  v_add_u32 v5, s13, v3")
    a("  global_store_dwordx4 v5, v[16:19], s[36:37] sc1")
    a(f"  s_mul_i32 s13, s6, {E3B}")
    a("  s_lshl_b32 s14, s4, 2")
    a("  s_add_u32 s14, s14, s7")
    a("  s_mul_i32 s14, s14, 2560")
    a("  s_add_u32 s13, s13, s14")
    a(f"  s_add_u32 s13, s13, {E3}")
    a("  v_add_u32 v6, s13, v3")
    a("  global_store_dwordx4 v6, v[16:19], s[36:37] sc1")
    a("  global_store_dwordx4 v6, v[16:19], s[36:37] offset:1024 sc1")
    a("  s_mov_b64 exec, 0xffffffff")
    a("  global_store_dwordx4 v6, v[16:19], s[36:37] offset:2048 sc1")
    a("  s_lshl_b32 s13, s11, 9")
    a(f"  s_add_u32 s13, s13, {E1H}")
    a("  v_add_u32 v7, s13, v3")
    a("  global_store_dwordx4 v7, v[16:19], s[36:37] sc1")
    a("  s_lshl_b32 s13, s12, 7")
    a("  s_lshl_b32 s14, s7, 5")
    a("  s_add_u32 s13, s13, s14")
    a(f"  s_add_u32 s13, s13, {E2T}")
    a("  v_add_u32 v8, s13, v3")
    a("  s_mov_b64 exec, 3")
    a("  global_store_dwordx4 v8, v[16:19], s[36:37] sc1")
    a("  s_mov_b64 exec, -1")
    a("  s_cmp_ge_u32 s5, 5")
    a("  s_cbranch_scc1 L_noe3f")
    a("  v_lshrrev_b32 v9, 5, v0")
    a(f"  v_mul_u32_u24 v9, {E3B}, v9")
    a("  v_and_b32 v10, 31, v0")
    a("  v_lshl_add_u32 v9, v10, 4, v9")
    a("  s_add_u32 s13, s4, 128")
    a("  s_mul_i32 s13, s13, 2560")
    a("  s_lshl_b32 s14, s5, 9")
    a("  s_add_u32 s13, s13, s14")
    a(f"  s_add_u32 s13, s13, {E3}")
    a("  v_add_u32 v9, s13, v9")
    a("  global_store_dwordx4 v9, v[16:19], s[36:37] sc1")
    a("L_noe3f:")
    a("  s_waitcnt vmcnt(0)")
    set_lds_flag(F_CLR, 1, 2)
    a("  v_mov_b32 v3, s11")
    a("  s_mov_b64 exec, 1")
    a("  global_store_byte v3, v2, s[34:35] sc1")
    a("  s_mov_b64 exec, -1")
    stamp(1)
    a("  s_mov_b32 s10, 4")
    wo_issue(10)
    a("  s_waitcnt vmcnt(0)")
    wo_prep()
    stamp(2)
    wo_finish(10)
    stamp(3)
    stamp_flush()
    a("  s_endpgm")

    a("L_aux3:")
    if cfg.cpf:
        a("  s_getpc_b64 s[50:51]")
        a("L_pc0:")
        a(f"  s_sub_u32 s50, s50, L_pc0-{NAME}_kernel")
        a("  s_subb_u32 s51, s51, 0")
        a("  v_lshlrev_b32 v3, 7, v0")
        a("  global_load_dword v16, v3, s[50:51]")
        a("  v_add_u32 v3, 8192, v3")
        a(f"  v_min_u32 v3, L_end-{NAME}_kernel, v3")
        a("  global_load_dword v17, v3, s[50:51]")
    a("  s_cmp_ge_u32 s5, 5")
    a("  s_cbranch_scc1 L_end")
    a("  s_mul_i32 s12, s4, 5")
    a("  s_add_u32 s12, s12, s5")
    a("  s_cmp_ge_u32 s12, 80")
    a("  s_cselect_b32 s13, 1, 0")
    a("  s_mul_i32 s14, s13, 80")
    a("  s_sub_u32 s14, s12, s14")
    a("  v_and_b32 v3, 1, v0")
    a("  v_lshrrev_b32 v4, 4, v0")
    a("  v_lshl_add_u32 v5, v3, 2, v4")
    a("  s_mul_i32 s15, s13, 640")
    a("  s_lshl_b32 s8, s14, 3")
    a("  s_add_u32 s15, s15, s8")
    a("  v_add_u32 v5, s15, v5")
    a("  v_lshlrev_b32 v5, 1, v5")
    a("  global_load_ushort v6, v5, s[16:17]")
    a("  v_lshrrev_b32 v7, 1, v0")
    a("  v_mul_u32_u24 v8, 2560, v7")
    a("  v_lshl_add_u32 v8, v3, 4, v8")
    a(f"  s_mul_i32 s15, s13, {E3B}")
    a("  s_lshl_b32 s8, s14, 5")
    a("  s_add_u32 s15, s15, s8")
    a(f"  s_add_u32 s15, s15, {E3}")
    a("  v_add_u32 v8, s15, v8")
    for i in range(1, 5):
        a(f"  v_add_u32 v{8+i}, {81920*i}, v8")
    a("  v_cmp_gt_u32 s[48:49], 27, v7")
    wait_lds(F_O, 1, 16, n=4, sleep=4)
    L = lab("af")
    D = lab("afd")
    a("  v_lshlrev_b32 v13, 2, v0")
    a("  s_mov_b32 s9, 0")
    a(f"{L}:")
    a("  global_load_dword v16, v13, s[34:35] sc1")
    a("  s_waitcnt vmcnt(0)")
    a("  v_cmp_ne_u32 vcc, 0x01010101, v16")
    a(f"  s_cbranch_vccz {D}")
    a("  s_add_u32 s9, s9, 1")
    a(f"  s_cmp_lt_u32 s9, {cfg.spin_g}")
    a(f"  s_cbranch_scc1 {L}")
    a(f"{D}:")
    stamp(1)
    L = lab("rp")
    D = lab("rpd")
    a("  s_mov_b32 s9, 0")
    a(f"{L}:")
    for i in range(5):
        a(f"  global_load_dwordx4 v[{16+4*i}:{19+4*i}], v{8+i}, s[36:37] sc1")
    a("  s_waitcnt vmcnt(0)")
    for r in range(4):
        a(f"  v_cndmask_b32 v{32+r}, 0, v{32+r}, s[48:49]")
    a("  v_max3_u32 v36, v16, v17, v18")
    a("  v_max3_u32 v37, v19, v20, v21")
    a("  v_max3_u32 v38, v22, v23, v24")
    a("  v_max3_u32 v39, v25, v26, v27")
    a("  v_max3_u32 v36, v36, v28, v29")
    a("  v_max3_u32 v37, v37, v30, v31")
    a("  v_max3_u32 v38, v38, v32, v33")
    a("  v_max3_u32 v39, v39, v34, v35")
    a("  v_max3_u32 v36, v36, v37, v38")
    a("  v_max_u32 v36, v36, v39")
    a("  v_cmp_eq_u32 vcc, -1, v36")
    a(f"  s_cbranch_vccz {D}")
    a("  s_add_u32 s9, s9, 1")
    a(f"  s_cmp_lt_u32 s9, {cfg.spin_g}")
    a(f"  s_cbranch_scc1 {L}")
    a(f"{D}:")
    stamp(2)
    for r in range(4):
        a(f"  v_add_f32 v{16+r}, v{16+r}, v{20+r}")
        a(f"  v_add_f32 v{24+r}, v{24+r}, v{28+r}")
    for r in range(4):
        a(f"  v_add_f32 v{16+r}, v{16+r}, v{24+r}")
    a("  v_permlane32_swap_b32 v16, v18")
    a("  v_permlane32_swap_b32 v17, v19")
    a("  v_permlane32_swap_b32 v32, v34")
    a("  v_permlane32_swap_b32 v33, v35")
    a("  v_add_f32 v16, v16, v18")
    a("  v_add_f32 v17, v17, v19")
    a("  v_add_f32 v32, v32, v34")
    a("  v_add_f32 v33, v33, v35")
    a("  v_permlane16_swap_b32 v16, v17")
    a("  v_permlane16_swap_b32 v32, v33")
    a("  v_add_f32 v16, v16, v17")
    a("  v_add_f32 v32, v32, v33")
    for r in (8, 4, 2):
        a(f"  v_add_f32_dpp v16, v16, v16 row_ror:{r} row_mask:0xf bank_mask:0xf")
        a(f"  v_add_f32_dpp v32, v32, v32 row_ror:{r} row_mask:0xf bank_mask:0xf")
    rne(16, 16)
    rne(32, 32)
    a("  v_mul_f32 v33, 0xbfb8aa3b, v32")
    a("  v_exp_f32 v33, v33")
    a("  v_add_f32 v33, 1.0, v33")
    a("  v_rcp_f32 v34, v33")
    a("  v_mul_f32 v35, v32, v34")
    a("  v_fma_f32 v36, -v35, v33, v32")
    a("  v_fmac_f32 v35, v36, v34")
    rne(35, 35)
    a("  v_mul_f32 v16, v16, v35")
    rne(16, 16)
    a("  v_lshlrev_b32 v6, 16, v6")
    a("  v_add_f32 v16, v6, v16")
    a("  v_cvt_pk_bf16_f32 v16, v16, v16")
    a("  s_mov_b32 exec_lo, 0x00030003")
    a("  s_mov_b32 exec_hi, 0x00030003")
    a("  global_store_short v5, v16, s[32:33] sc1")
    a("  s_mov_b64 exec, -1")
    stamp(3)
    stamp_flush()
    a("  s_endpgm")

    a("L_kwave:")
    if cfg.prio:
        a("  s_setprio 2")
    a("  s_sub_u32 s10, s3, 4")
    srd(40, 18, 0x8000000)
    a("  s_lshl_b32 s12, s6, 26")
    a("  s_lshl_b32 s13, s4, 21")
    a("  s_add_u32 s12, s12, s13")
    a("  s_lshl_b32 s13, s7, 17")
    a("  s_add_u32 s12, s12, s13")
    a("  s_lshl_b32 s13, s10, 15")
    a("  s_add_u32 s12, s12, s13")
    a(f"  s_add_u32 s12, s12, {6144*256}")
    a("  v_lshlrev_b32 v3, 4, v0")
    for t in range(32):
        if cfg.kwin and t >= cfg.kwin:
            a(f"  s_waitcnt vmcnt({cfg.kwin-1})")
        a(f"  buffer_load_dwordx4 v[{16+4*t}:{19+4*t}], v3, s[40:43], s12 offen offset:{(t&3)*1024} {cfg.nt_kv}")
        if (t & 3) == 3 and t < 31:
            a("  s_add_u32 s12, s12, 4096")
    if cfg.vgate:
        a("  s_lshl_b32 s12, s10, 2")
        a("  v_mov_b32 v4, s12")
        a(f"  ds_write_b32 v4, v2 offset:{F_KI}")
    stamp(1)
    a("  v_and_b32 v4, 15, v0")
    a("  v_lshlrev_b32 v5, 4, v4")
    wait_lds(F_Q, 1, 6)
    a(f"  ds_read_b128 v[144:147], v5 offset:{L_Q}")
    a("  s_waitcnt lgkmcnt(0)")
    stamp(2)
    R = lambda t: 16 + 4 * t
    for G in range(8):
        t0 = 4 * G
        a(f"  s_waitcnt vmcnt({28-4*G})")
        for k in range(4):
            for t in range(t0, t0 + 4):
                c = "0" if k == 0 else f"v{R(t)}"
                a(f"  v_dot2_f32_bf16 v{R(t)}, v{R(t)+k}, v{144+k}, {c}")
        for t in (t0, t0 + 2):
            a(f"  v_add_f32_dpp v{R(t)}, v{R(t)}, v{R(t)} row_ror:8 row_mask:0xf bank_mask:0x3")
            a(f"  v_add_f32_dpp v{R(t)}, v{R(t+1)}, v{R(t+1)} row_ror:8 row_mask:0xf bank_mask:0xc")
        a(f"  v_add_f32_dpp v{R(t0)}, v{R(t0)}, v{R(t0)} row_half_mirror row_mask:0xf bank_mask:0x5")
        a(f"  v_add_f32_dpp v{R(t0)}, v{R(t0+2)}, v{R(t0+2)} row_half_mirror row_mask:0xf bank_mask:0xa")
    a("  v_and_b32 v6, 2, v0")
    a("  v_cmp_ne_u32 s[48:49], 0, v6")
    a("  v_and_b32 v6, 1, v0")
    a("  v_cmp_ne_u32 s[50:51], 0, v6")
    for i in range(4):
        x, y = R(8 * i), R(8 * i + 4)
        a(f"  v_cndmask_b32 v{x+1}, v{x}, v{y}, s[48:49]")
        a(f"  v_cndmask_b32 v{x+2}, v{y}, v{x}, s[48:49]")
    for i in range(4):
        x = R(8 * i)
        a(f"  v_add_f32_dpp v{x}, v{x+2}, v{x+1} quad_perm:[2,3,0,1] row_mask:0xf bank_mask:0xf")
    for i in range(2):
        x, y = R(16 * i), R(16 * i + 8)
        a(f"  v_cndmask_b32 v{x+1}, v{x}, v{y}, s[50:51]")
        a(f"  v_cndmask_b32 v{x+2}, v{y}, v{x}, s[50:51]")
    for i in range(2):
        x = R(16 * i)
        a(f"  v_add_f32_dpp v{x}, v{x+2}, v{x+1} quad_perm:[1,0,3,2] row_mask:0xf bank_mask:0xf")
    S0, S1 = R(0), R(16)
    a(f"  v_cvt_pk_bf16_f32 v6, v{S0}, v{S1}")
    a("  v_lshlrev_b32 v7, 16, v6")
    a("  v_and_b32 v8, 0xffff0000, v6")
    a("  v_mul_f32 v7, 0x3db504f3, v7")
    a("  v_mul_f32 v8, 0x3db504f3, v8")
    a("  v_cvt_pk_bf16_f32 v6, v7, v8")
    a("  v_lshlrev_b32 v7, 16, v6")
    a("  v_and_b32 v8, 0xffff0000, v6")
    a("  v_max_f32 v9, v7, v8")
    wave_allreduce_row(9, "v_max_f32")
    a("  v_mov_b32 v10, v9")
    a("  v_permlane16_swap_b32 v9, v10")
    a("  v_max_f32 v9, v9, v10")
    a("  v_mov_b32 v10, v9")
    a("  v_permlane32_swap_b32 v9, v10")
    a("  v_max_f32 v9, v9, v10")
    a("  v_sub_f32 v7, v7, v9")
    a("  v_sub_f32 v8, v8, v9")
    a("  v_mul_f32 v7, 0x3fb8aa3b, v7")
    a("  v_mul_f32 v8, 0x3fb8aa3b, v8")
    a("  v_exp_f32 v7, v7")
    a("  v_exp_f32 v8, v8")
    a("  v_add_f32 v10, v7, v8")
    wave_allreduce_row(10)
    a("  v_mov_b32 v11, v10")
    a("  v_permlane16_swap_b32 v10, v11")
    a("  v_add_f32 v10, v10, v11")
    a("  v_mov_b32 v11, v10")
    a("  v_permlane32_swap_b32 v10, v11")
    a("  v_add_f32 v10, v10, v11")
    a("  v_bfrev_b32 v11, v4")
    a("  v_lshrrev_b32 v11, 28, v11")
    a("  v_lshrrev_b32 v12, 4, v0")
    a("  v_lshl_add_u32 v11, v11, 2, v12")
    a("  v_lshlrev_b32 v11, 2, v11")
    a("  s_lshl_b32 s12, s6, 5")
    a("  s_add_u32 s12, s12, s4")
    a("  s_lshl_b32 s13, s7, 2")
    a("  s_add_u32 s13, s13, s10")
    a("  s_lshl_b32 s14, s12, 12")
    a("  s_lshl_b32 s15, s13, 8")
    a("  s_add_u32 s14, s14, s15")
    a(f"  s_add_u32 s14, s14, {E2S}")
    a("  v_add_u32 v11, s14, v11")
    a("  s_lshl_b32 s14, s12, 7")
    a("  s_lshl_b32 s15, s13, 3")
    a("  s_add_u32 s14, s14, s15")
    a(f"  s_add_u32 s14, s14, {E2T}")
    a("  v_mov_b32 v12, s14")
    a("  v_mov_b32 v14, -2")
    a("  v_min_u32 v6, v6, v14")
    a("  v_min_u32 v150, v9, v14")
    a("  v_min_u32 v151, v10, v14")
    wait_lds(F_CLR, 1, 13, sleep=0)
    a("  global_store_dword v11, v6, s[36:37] sc1")
    a("  s_mov_b64 exec, 1")
    a("  global_store_dwordx2 v12, v[150:151], s[36:37] sc1")
    a("  s_mov_b64 exec, -1")
    stamp(3)
    wo_issue(10)
    a("  s_lshl_b32 s12, s6, 5")
    a("  s_add_u32 s12, s12, s4")
    a("  s_lshl_b32 s14, s12, 12")
    a("  s_lshl_b32 s15, s10, 10")
    a("  s_add_u32 s14, s14, s15")
    a(f"  s_add_u32 s14, s14, {E2S}")
    a("  v_lshl_add_u32 v11, v0, 4, s14")
    a("  s_lshl_b32 s14, s12, 7")
    a(f"  s_add_u32 s14, s14, {E2T}")
    a("  v_lshl_add_u32 v12, v4, 3, s14")
    L = lab("sp")
    D = lab("spd")
    a("  s_mov_b32 s9, 0")
    a(f"{L}:")
    a("  global_load_dwordx4 v[80:83], v11, s[36:37] sc1")
    a("  global_load_dwordx2 v[84:85], v12, s[36:37] sc1")
    a("  s_waitcnt vmcnt(0)")
    a("  v_max3_u32 v86, v80, v81, v82")
    a("  v_max3_u32 v87, v83, v84, v85")
    a("  v_max_u32 v86, v86, v87")
    a("  v_cmp_eq_u32 vcc, -1, v86")
    a(f"  s_cbranch_vccz {D}")
    a("  s_add_u32 s9, s9, 1")
    a(f"  s_cmp_lt_u32 s9, {cfg.spin_g}")
    a(f"  s_cbranch_scc1 {L}")
    a(f"{D}:")
    stamp(4)
    a("  v_mov_b32 v86, v84")
    wave_allreduce_row(86, "v_max_f32")
    a("  v_sub_f32 v87, v84, v86")
    a("  v_mul_f32 v87, 0x3fb8aa3b, v87")
    a("  v_exp_f32 v87, v87")
    a("  v_mul_f32 v87, v87, v85")
    wave_allreduce_row(87)
    a("  v_rcp_f32 v88, v87")
    a("  v_fma_f32 v89, -v87, v88, 1.0")
    a("  v_fmac_f32 v88, v89, v88")
    for r in range(4):
        a(f"  v_lshlrev_b32 v{90+2*r}, 16, v{80+r}")
        a(f"  v_and_b32 v{91+2*r}, 0xffff0000, v{80+r}")
    for i in range(8):
        a(f"  v_sub_f32 v{90+i}, v{90+i}, v86")
    for i in range(8):
        a(f"  v_mul_f32 v{90+i}, 0x3fb8aa3b, v{90+i}")
    for i in range(8):
        a(f"  v_exp_f32 v{90+i}, v{90+i}")
    for i in range(8):
        a(f"  v_mul_f32 v{90+i}, v{90+i}, v88")
    for r in range(4):
        a(f"  v_cvt_pk_bf16_f32 v{80+r}, v{90+2*r}, v{91+2*r}")
    a("  v_and_b32 v13, 3, v0")
    a("  v_lshlrev_b32 v13, 8, v13")
    a("  v_lshrrev_b32 v14, 2, v0")
    a("  v_lshl_add_u32 v13, v14, 2, v13")
    a("  s_lshl_b32 s12, s10, 10")
    a("  v_add_u32 v13, s12, v13")
    for r in range(4):
        a(f"  ds_write_b32 v13, v{80+r} offset:{L_P+64*r}")
    a("  s_lshl_b32 s12, s10, 2")
    a("  v_mov_b32 v13, s12")
    a(f"  ds_write_b32 v13, v2 offset:{F_P}")
    stamp(5)
    wo_prep()
    wo_finish(10)
    stamp(6)
    stamp_flush()
    a("  s_endpgm")

    a("L_vwave:")
    if cfg.prio:
        a("  s_setprio 0")
    a("  s_sub_u32 s10, s3, 8")
    srd(40, 20, 0x8000000)
    a("  s_lshl_b32 s12, s6, 26")
    a("  s_lshl_b32 s13, s4, 21")
    a("  s_add_u32 s12, s12, s13")
    a("  s_lshl_b32 s13, s10, 17")
    a("  s_add_u32 s12, s12, s13")
    a("  s_lshl_b32 s13, s7, 6")
    a("  s_add_u32 s12, s12, s13")
    a(f"  s_add_u32 s12, s12, {6144*256}")
    a("  v_lshrrev_b32 v3, 2, v0")
    a("  v_and_b32 v4, 3, v0")
    a("  v_lshlrev_b32 v5, 8, v3")
    a("  v_lshl_add_u32 v5, v4, 4, v5")
    if cfg.vfake:
        a("  s_lshl_b32 s12, s6, 26")
        a("  s_lshl_b32 s13, s4, 21")
        a("  s_add_u32 s12, s12, s13")
        a("  s_lshl_b32 s13, s7, 17")
        a("  s_add_u32 s12, s12, s13")
        a("  s_lshl_b32 s13, s10, 15")
        a("  s_add_u32 s12, s12, s13")
        a(f"  s_add_u32 s12, s12, {6144*256}")
        a("  v_lshlrev_b32 v5, 4, v0")
    if cfg.vgate and cfg.vgate_all:
        wait_lds(F_KI, 1, 8, n=4, sleep=2)
    elif cfg.vgate:
        a("  s_lshl_b32 s13, s10, 2")
        a("  v_mov_b32 v6, s13")
        L = lab("wk")
        D = lab("wkd")
        a("  s_mov_b32 s9, 0")
        a(f"{L}:")
        a(f"  ds_read_b32 v7, v6 offset:{F_KI}")
        a("  s_waitcnt lgkmcnt(0)")
        a("  v_readfirstlane_b32 s8, v7")
        a("  s_cmp_lg_u32 s8, 0")
        a(f"  s_cbranch_scc1 {D}")
        a("  s_sleep 2")
        a("  s_add_u32 s9, s9, 1")
        a(f"  s_cmp_lt_u32 s9, {SPIN_L}")
        a(f"  s_cbranch_scc1 {L}")
        a(f"{D}:")
    stamp(5)
    for i in range(16):
        off = (i >> 2) * 32768 + (i & 3) * 4096
        off2 = off + 16384
        if cfg.vfake:
            off, off2 = 2048 * i, 2048 * i + 1024
        a(f"  s_add_u32 s13, s12, {off}")
        a(f"  s_add_u32 s14, s12, {off2}")
        if cfg.vwin and 2 * i >= cfg.vwin:
            a(f"  s_waitcnt vmcnt({cfg.vwin-1})")
        a(f"  buffer_load_dwordx4 v[{16+8*i}:{19+8*i}], v5, s[40:43], s13 offen {cfg.nt_kv}")
        if cfg.vwin and 2 * i + 1 >= cfg.vwin:
            a(f"  s_waitcnt vmcnt({cfg.vwin-1})")
        a(f"  buffer_load_dwordx4 v[{20+8*i}:{23+8*i}], v5, s[40:43], s14 offen {cfg.nt_kv}")
    stamp(1)
    a("  s_mov_b32 s14, 0x05040100")
    a("  s_mov_b32 s15, 0x07060302")
    a("  s_lshl_b32 s12, s10, 2")
    a("  v_mov_b32 v6, s12")
    L = lab("wp")
    D = lab("wpd")
    a("  s_mov_b32 s9, 0")
    a(f"{L}:")
    a(f"  ds_read_b32 v7, v6 offset:{F_P}")
    a("  s_waitcnt lgkmcnt(0)")
    a("  v_readfirstlane_b32 s8, v7")
    a("  s_cmp_lg_u32 s8, 0")
    a(f"  s_cbranch_scc1 {D}")
    a("  s_sleep 2")
    a("  s_add_u32 s9, s9, 1")
    a(f"  s_cmp_lt_u32 s9, {SPIN_L}")
    a(f"  s_cbranch_scc1 {L}")
    a(f"{D}:")
    a("  s_lshl_b32 s12, s10, 10")
    a("  v_lshlrev_b32 v6, 6, v3")
    a("  v_add_u32 v6, s12, v6")
    for i in range(4):
        a(f"  ds_read_b128 v[{144+4*i}:{147+4*i}], v6 offset:{L_P+16*i}")
    for i in range(8):
        a(f"  v_mov_b32 v{8+i}, 0")
    a("  s_waitcnt lgkmcnt(0)")
    stamp(2)
    T = 160
    for i in range(16):
        A, B = 16 + 8 * i, 20 + 8 * i
        a(f"  s_waitcnt vmcnt({30-2*i})")
        for d in range(4):
            t0, t1 = T + 2 * (d % 3), T + 2 * (d % 3) + 1
            a(f"  v_perm_b32 v{t0}, v{B+d}, v{A+d}, s14")
            a(f"  v_perm_b32 v{t1}, v{B+d}, v{A+d}, s15")
            a(f"  v_dot2c_f32_bf16 v{8+2*d}, v{t0}, v{144+i}")
            a(f"  v_dot2c_f32_bf16 v{9+2*d}, v{t1}, v{144+i}")
    stamp(3)
    for r in range(4):
        a(f"  v_permlane32_swap_b32 v{8+r}, v{12+r}")
    for r in range(4):
        a(f"  v_add_f32 v{8+r}, v{8+r}, v{12+r}")
    a("  v_permlane16_swap_b32 v8, v10")
    a("  v_permlane16_swap_b32 v9, v11")
    a("  v_add_f32 v8, v8, v10")
    a("  v_add_f32 v9, v9, v11")
    for r in (8, 4):
        a(f"  v_add_f32_dpp v8, v8, v8 row_ror:{r} row_mask:0xf bank_mask:0xf")
        a(f"  v_add_f32_dpp v9, v9, v9 row_ror:{r} row_mask:0xf bank_mask:0xf")
    a("  v_lshlrev_b32 v6, 5, v4")
    a("  v_lshrrev_b32 v7, 4, v0")
    a("  v_lshl_add_u32 v6, v7, 3, v6")
    a("  s_lshl_b32 s12, s10, 7")
    a("  v_add_u32 v6, s12, v6")
    a("  s_mov_b32 exec_lo, 0x000f000f")
    a("  s_mov_b32 exec_hi, 0x000f000f")
    a(f"  ds_write_b64 v6, v[8:9] offset:{L_O}")
    a("  s_mov_b64 exec, -1")
    a("  s_lshl_b32 s12, s10, 2")
    a("  v_mov_b32 v7, s12")
    a(f"  ds_write_b32 v7, v2 offset:{F_O}")
    stamp(4)
    stamp_flush()
    a("L_end:")
    a("  s_endpgm")
    a('.section .rodata,"a"')
    a(".p2align 6")
    a(f".amdhsa_kernel {NAME}_kernel")
    a("  .amdhsa_next_free_vgpr 168")
    a("  .amdhsa_next_free_sgpr 96")
    a("  .amdhsa_accum_offset 168")
    a("  .amdhsa_group_segment_fixed_size 0")
    a("  .amdhsa_kernarg_size 88")
    a("  .amdhsa_user_sgpr_count 2")
    a("  .amdhsa_user_sgpr_kernarg_segment_ptr 1")
    a("  .amdhsa_system_sgpr_workgroup_id_x 1")
    a(".end_amdhsa_kernel")
    return a.resolve() + "\n"


if __name__ == "__main__":
    out = sys.argv[1] if len(sys.argv) > 1 else f"cdna_kernels/{NAME}.s"

    class C(Cfg):
        pass
    for kv in sys.argv[2:]:
        k, v = kv.split("=")
        cur = getattr(C, k)
        if isinstance(cur, bool):
            v = v in ("1", "True", "true")
        elif isinstance(cur, int):
            v = int(v)
        setattr(C, k, v)
    open(out, "w").write(gen(C))
```

```python
import sys, os
sys.path.insert(0, "work")
from asmlib import Asm

NAME = "recurrent_scan__sliding_block_cached__dense_activation_relu__decode"

E1Q = 0x0
E1H = 0x40000
E2T = 0x60000
E2O = 0x64000
E3 = 0x90000
E3B = 182 * 2560
TS = 0x400000

F_Q, F_OKA, F_OKB, F_H, CNT_O = 0, 4, 8, 12, 16
F_P, F_KI, F_VI = 32, 48, 64
L_ML = 96
L_Q, L_HB, L_XN, L_P, L_O = 256, 512, 1024, 2560, 4608
LDS_BYTES = 8192

SPIN_L = 1 << 21


class Cfg:
    nt_kv = "nt"
    nt_w = "nt"
    nt_wo = "nt"
    stamps = False
    prio = True
    win = 8
    spin_g = 1 << 17
    cpf = True
    walk = True
    gate_wo = True
    gate_w2 = True
    psleep = 2
    fsleep = 60


def gen(cfg=Cfg):
    a = Asm()
    uid = [0]
    nstub = [0]

    def lab(p):
        uid[0] += 1
        return f"L_{p}_{uid[0]}"

    def stub(natural=False):
        if not cfg.walk:
            return
        k = nstub[0]
        nstub[0] += 1
        if not natural:
            a(f"  s_branch L_wsk{k}")
        a(f"L_w{k}:")
        a(f"  s_branch L_w{k+1}")
        if not natural:
            a(f"L_wsk{k}:")

    def stamp(i):
        if not cfg.stamps:
            return
        a("  s_memrealtime s[62:63]")
        a("  s_waitcnt lgkmcnt(0)")
        a(f"  v_writelane_b32 v15, s62, {i}")

    def stamp_flush():
        if not cfg.stamps:
            return
        a("  s_mul_i32 s62, s2, 12")
        a("  s_add_u32 s62, s62, s3")
        a("  s_lshl_b32 s62, s62, 6")
        a(f"  s_add_u32 s62, s62, {TS}")
        a("  v_lshlrev_b32 v14, 2, v0")
        a("  v_add_u32 v14, s62, v14")
        a("  s_mov_b64 exec, 0xffff")
        a("  global_store_dword v14, v15, s[36:37]")
        a("  s_mov_b64 exec, -1")

    def srd(base, lo, size):
        a(f"  s_mov_b32 s{base}, s{lo}")
        a(f"  s_and_b32 s{base+1}, s{lo+1}, 0xffff")
        a(f"  s_mov_b32 s{base+2}, {size}")
        a(f"  s_mov_b32 s{base+3}, 0x20000")

    def wait_lds(off, vz, vt, n=1, sleep=2):
        L = lab("wl")
        D = lab("wld")
        a("  s_mov_b32 s9, 0")
        a(f"{L}:")
        if n == 1:
            a(f"  ds_read_b32 v{vt}, v{vz} offset:{off}")
            a("  s_waitcnt lgkmcnt(0)")
        else:
            a(f"  ds_read_b128 v[{vt}:{vt+3}], v{vz} offset:{off}")
            a("  s_waitcnt lgkmcnt(0)")
            a(f"  v_and_b32 v{vt}, v{vt}, v{vt+1}")
            a(f"  v_and_b32 v{vt+2}, v{vt+2}, v{vt+3}")
            a(f"  v_and_b32 v{vt}, v{vt}, v{vt+2}")
        a(f"  v_readfirstlane_b32 s8, v{vt}")
        a("  s_cmp_lg_u32 s8, 0")
        a(f"  s_cbranch_scc1 {D}")
        if sleep:
            a(f"  s_sleep {sleep}")
        a("  s_add_u32 s9, s9, 1")
        a(f"  s_cmp_lt_u32 s9, {SPIN_L}")
        a(f"  s_cbranch_scc1 {L}")
        a(f"{D}:")

    def set_lds_flag(off, vz=1, vone=2):
        a(f"  ds_write_b32 v{vz}, v{vone} offset:{off}")

    def wave_allreduce_row(v, op="v_add_f32"):
        for r in (8, 4, 2, 1):
            a(f"  {op}_dpp v{v}, v{v}, v{v} row_ror:{r} row_mask:0xf bank_mask:0xf")

    def rne(dst, src):
        a(f"  v_cvt_pk_bf16_f32 v{dst}, v{src}, v{src}")
        a(f"  v_lshlrev_b32 v{dst}, 16, v{dst}")

    def spec_publish(emit_store):
        D = lab("sp")
        a(f"  ds_read_b32 v16, v1 offset:{F_OKA}")
        a("  s_waitcnt lgkmcnt(0)")
        a("  v_readfirstlane_b32 s10, v16")
        emit_store()
        a("  s_cmp_lg_u32 s10, 0")
        a(f"  s_cbranch_scc1 {D}")
        wait_lds(F_OKA, 1, 16, sleep=2)
        emit_store()
        a(f"{D}:")

    def poll_loop(issue, check, sleep=0):
        L = lab("pl")
        D = lab("pld")
        a("  s_mov_b32 s9, 0")
        a(f"{L}:")
        issue()
        a("  s_waitcnt vmcnt(0)")
        check()
        a(f"  s_cbranch_vccz {D}")
        if sleep:
            a(f"  s_sleep {sleep}")
        a("  s_add_u32 s9, s9, 1")
        a(f"  s_cmp_lt_u32 s9, {cfg.spin_g}")
        a(f"  s_cbranch_scc1 {L}")
        a(f"{D}:")

    def max_tree(regs, t):
        regs = list(regs)
        k = 0
        while len(regs) > 1:
            new = []
            i = 0
            while i < len(regs):
                if len(regs) - i >= 3:
                    a(f"  v_max3_u32 v{t+k}, v{regs[i]}, v{regs[i+1]}, v{regs[i+2]}")
                    new.append(t + k); k += 1; i += 3
                elif len(regs) - i == 2:
                    a(f"  v_max_u32 v{t+k}, v{regs[i]}, v{regs[i+1]}")
                    new.append(t + k); k += 1; i += 2
                else:
                    new.append(regs[i]); i += 1
            regs = new
        a(f"  v_cmp_eq_u32 vcc, -1, v{regs[0]}")

    def tile_params(si):
        a(f"  s_sub_u32 s75, s{si}, 20")
        a(f"  s_cmp_lt_u32 s{si}, 20")
        a(f"  s_cselect_b32 s75, s{si}, s75")
        a("  s_cselect_b32 s76, 2, 1")
        a("  s_cselect_b32 s72, 1, 2")
        a("  s_cselect_b32 s70, 0, 128")
        a("  s_lshr_b32 s73, s75, s76")
        a("  s_lshl_b32 s74, s73, s76")
        a("  s_sub_u32 s74, s75, s74")
        a("  s_lshl_b32 s75, s4, s76")
        a("  s_add_u32 s75, s75, s74")
        a("  s_add_u32 s70, s70, s75")
        a("  s_mul_i32 s70, s70, 2560")
        a("  s_mul_i32 s71, s75, 32*1280")
        a("  s_lshl_b32 s75, s73, 9")
        a("  s_add_u32 s70, s70, s75")
        a("  s_lshl_b32 s75, s73, 8")
        a("  s_add_u32 s71, s71, s75")
        a("  s_cmp_ge_u32 s73, 5")
        a("  s_cselect_b32 s75, 0, 2")
        a("  s_cmp_ge_u32 s4, 27")
        a("  s_cselect_b32 s75, 0, s75")
        a("  s_cmp_eq_u32 s72, 2")
        a("  s_cselect_b32 s72, s75, s72")

    def e3_lane_off(vd, vt):
        a(f"  v_lshrrev_b32 v{vd}, 5, v0")
        a(f"  v_mul_u32_u24 v{vd}, {E3B}, v{vd}")
        a(f"  v_and_b32 v{vt}, 15, v0")
        a(f"  v_lshl_add_u32 v{vd}, v{vt}, 5, v{vd}")
        a(f"  v_bfe_u32 v{vt}, v0, 4, 1")
        a(f"  v_lshl_add_u32 v{vd}, v{vt}, 4, v{vd}")

    a(f"; @launch grid=(256,1,1) block=(768,1,1) lds={LDS_BYTES}")
    a('.amdgcn_target "amdgcn-amd-amdhsa--gfx950"')
    a(".text")
    a(f".globl {NAME}_kernel")
    a(".p2align 8")
    a(f".type {NAME}_kernel,@function")
    a(f"{NAME}_kernel:")
    a("  s_cmp_ge_u32 s2, 256")
    a("  s_cbranch_scc1 L_end")
    a("  s_load_dwordx16 s[16:31], s[0:1], 0")
    a("  s_load_dwordx4 s[32:35], s[0:1], 64")
    a("  s_load_dwordx2 s[36:37], s[0:1], 80")
    a("  v_lshrrev_b32 v1, 6, v0")
    a("  v_and_b32 v0, 63, v0")
    a("  v_readfirstlane_b32 s3, v1")
    a("  s_lshr_b32 s4, s2, 3")
    a("  s_and_b32 s5, s2, 7")
    a("  s_lshr_b32 s6, s5, 2")
    a("  s_and_b32 s7, s5, 3")
    a("  s_mov_b32 s11, s2")
    a("  v_mov_b32 v1, 0")
    a("  v_mov_b32 v2, 1")
    if cfg.stamps:
        a("  v_mov_b32 v15, 0")
    a("  s_cmp_eq_u32 s3, 3")
    a("  s_cbranch_scc0 L_noinit")
    if cfg.cpf:
        a("  s_getpc_b64 s[50:51]")
        a("L_pc0:")
        a(f"  s_sub_u32 s50, s50, L_pc0-{NAME}_kernel")
        a("  s_subb_u32 s51, s51, 0")
        a("  v_lshlrev_b32 v3, 7, v0")
        a(f"  v_min_u32 v4, L_end-{NAME}_kernel, v3")
        a("  global_load_dword v16, v4, s[50:51]")
        a("  v_add_u32 v3, 8192, v3")
        a(f"  v_min_u32 v4, L_end-{NAME}_kernel, v3")
        a("  global_load_dword v17, v4, s[50:51]")
    a("  v_lshlrev_b32 v3, 2, v0")
    a("  ds_write_b32 v3, v1")
    a("  s_waitcnt lgkmcnt(0)")
    a("L_noinit:")
    a("  s_barrier")
    a("  s_cmp_lt_u32 s3, 4")
    a("  s_cbranch_scc1 L_aux")
    a("  s_and_b32 s10, s3, 3")
    a("  s_lshl_b32 s12, s6, 26")
    a("  s_lshl_b32 s13, s4, 21")
    a("  s_add_u32 s12, s12, s13")
    a("  s_lshl_b32 s13, s7, 17")
    a("  s_add_u32 s12, s12, s13")
    a("  s_lshl_b32 s13, s10, 15")
    a("  s_add_u32 s12, s12, s13")
    a(f"  s_add_u32 s12, s12, {6144*256}")
    a("  v_lshlrev_b32 v3, 4, v0")
    a("  s_lshl_b32 s13, s10, 2")
    a("  v_mov_b32 v4, s13")
    a("  s_cmp_ge_u32 s3, 8")
    a("  s_cbranch_scc1 L_vpre")
    if cfg.prio:
        a("  s_setprio 1")
    a("  s_waitcnt lgkmcnt(0)")
    srd(40, 18, 0x8000000)
    a(f"  v_add_u32 v5, {F_KI}, v4")
    a("  s_branch L_issue")
    a("L_vpre:")
    a(f"  v_add_u32 v5, {F_VI}, v4")
    wait_lds(F_KI, 1, 8, n=4, sleep=4)
    srd(40, 20, 0x8000000)
    a("L_issue:")
    stamp(0)
    for t in range(32):
        if cfg.win and t >= cfg.win:
            a(f"  s_waitcnt vmcnt({cfg.win-1})")
        a(f"  buffer_load_dwordx4 v[{16+4*t}:{19+4*t}], v3, s[40:43], s12 offen offset:{(t&3)*1024} {cfg.nt_kv}")
        if (t & 3) == 3 and t < 31:
            a("  s_add_u32 s12, s12, 4096")
    a("  ds_write_b32 v5, v2")
    stamp(1)
    a("  s_cmp_ge_u32 s3, 8")
    a("  s_cbranch_scc1 L_vwave")
    a("  s_branch L_kwave")

    a("L_aux:")
    if cfg.prio:
        a("  s_setprio 3")
    a("  s_cmp_eq_u32 s3, 2")
    a("  s_cbranch_scc1 L_aux2")
    a("  s_cmp_eq_u32 s3, 3")
    a("  s_cbranch_scc1 L_aux3")
    a("  v_lshrrev_b32 v3, 5, v0")
    a("  v_and_b32 v4, 31, v0")
    a("  v_mul_u32_u24 v5, 1280, v3")
    a("  v_lshl_add_u32 v6, v4, 3, v5")
    a("  v_min_u32 v7, 19, v4")
    a("  v_lshl_add_u32 v7, v7, 3, v5")
    a("  s_mul_i32 s8, s5, 160")
    a("  v_add_u32 v7, s8, v7")
    a("  v_lshrrev_b32 v8, 4, v0")
    a("  v_and_b32 v9, 15, v0")
    a("  s_waitcnt lgkmcnt(0)")
    stamp(0)
    for i in range(5):
        a(f"  global_load_dwordx2 v[{20+2*i}:{21+2*i}], v6, s[16:17] offset:{256*i}")
    a("  global_load_dwordx2 v[30:31], v7, s[16:17]")
    a("  s_cmp_eq_u32 s3, 1")
    a("  s_cbranch_scc1 L_iss1")
    srd(40, 22, 640 * 8192)
    a("  v_lshlrev_b32 v10, 13, v8")
    a("  v_lshl_add_u32 v10, v9, 4, v10")
    a("  s_mul_i32 s12, s5, 80*8192")
    a("  s_lshl_b32 s13, s4, 8")
    a("  s_add_u32 s12, s12, s13")
    for t in range(20):
        a(f"  buffer_load_dwordx4 v[{40+4*t}:{43+4*t}], v10, s[40:43], s12 offen {cfg.nt_w}")
        if t < 19:
            a("  s_add_u32 s12, s12, 32768")
    a("  s_branch L_ln")
    a("L_iss1:")
    srd(40, 28, 640 * 3456)
    a("  s_cmp_ge_u32 s4, 27")
    a("  s_cbranch_scc1 L_end")
    a("  v_mul_u32_u24 v10, 3456, v8")
    a("  v_lshl_add_u32 v10, v9, 3, v10")
    a("  s_mul_i32 s12, s5, 80*3456")
    a("  s_lshl_b32 s13, s4, 7")
    a("  s_add_u32 s12, s12, s13")
    for t in range(5):
        for u in range(4):
            pass
    for t in range(20):
        a(f"  buffer_load_dwordx2 v[{40+2*t}:{41+2*t}], v10, s[40:43], s12 offen {cfg.nt_w}")
        if t < 19:
            a("  s_add_u32 s12, s12, 13824")
    a("L_ln:")
    X = 120
    a("  s_mul_i32 s13, s3, 768")
    a("  v_mul_u32_u24 v143, 320, v3")
    a("  v_lshl_add_u32 v143, v4, 2, v143")
    a("  v_add_u32 v143, s13, v143")
    a("  s_waitcnt vmcnt(21)")
    for i in range(10):
        a(f"  v_lshlrev_b32 v{X+2*i}, 16, v{20+i}")
        a(f"  v_and_b32 v{X+2*i+1}, 0xffff0000, v{20+i}")
    for i in range(10):
        a(f"  v_add_f32 v{144+i}, v{X+2*i}, v{X+2*i+1}")
    for i in range(5):
        a(f"  v_add_f32 v{144+i}, v{144+i}, v{149+i}")
    a("  v_add_f32 v144, v144, v145")
    a("  v_add_f32 v146, v146, v147")
    a("  v_add_f32 v144, v144, v148")
    a("  v_add_f32 v140, v144, v146")

    def half_allreduce(v, t):
        wave_allreduce_row(v)
        a(f"  v_mov_b32 v{t}, v{v}")
        a(f"  v_permlane16_swap_b32 v{v}, v{t}")
        a(f"  v_add_f32 v{v}, v{v}, v{t}")

    def div640(v, t, e):
        a(f"  v_mul_f32 v{t}, 0x3acccccd, v{v}")
        a(f"  v_fma_f32 v{e}, v{t}, s12, v{v}")
        a(f"  v_fmac_f32 v{t}, 0x3acccccd, v{e}")
        a(f"  v_mov_b32 v{v}, v{t}")

    a("  s_mov_b32 s12, 0xc4200000")
    half_allreduce(140, 141)
    div640(140, 141, 142)
    for i in range(20):
        a(f"  v_sub_f32 v{X+i}, v{X+i}, v140")
    a(f"  v_mul_f32 v141, v{X}, v{X}")
    a(f"  v_mul_f32 v142, v{X+1}, v{X+1}")
    for i in range(2, 20, 2):
        a(f"  v_fmac_f32 v141, v{X+i}, v{X+i}")
        a(f"  v_fmac_f32 v142, v{X+i+1}, v{X+i+1}")
    a("  v_add_f32 v141, v141, v142")
    half_allreduce(141, 142)
    div640(141, 142, 144)
    rne(140, 140)
    rne(141, 141)
    a("  v_add_f32 v141, 0x3727c5ac, v141")
    rne(141, 141)
    a("  v_sqrt_f32 v141, v141")
    rne(141, 141)
    a("  v_rcp_f32 v142, v141")
    a("  s_waitcnt vmcnt(20)")
    a("  v_lshlrev_b32 v144, 16, v30")
    a("  v_and_b32 v145, 0xffff0000, v30")
    a("  v_lshlrev_b32 v146, 16, v31")
    a("  v_and_b32 v147, 0xffff0000, v31")
    for i in range(4):
        a(f"  v_sub_f32 v{144+i}, v{144+i}, v140")
    for i in range(4):
        rne(144 + i, 144 + i)
    for i in range(4):
        a(f"  v_mul_f32 v{148+i}, v{144+i}, v142")
    for i in range(4):
        a(f"  v_fma_f32 v{152+i}, -v{148+i}, v141, v{144+i}")
    for i in range(4):
        a(f"  v_fmac_f32 v{148+i}, v{152+i}, v142")
    for i in range(4):
        a(f"  v_cvt_pk_bf16_f32 v{148+i}, v{148+i}, v{148+i}")
    a("  s_mov_b32 exec_lo, 0xfffff")
    a("  s_mov_b32 exec_hi, 0xfffff")
    for g in range(4):
        a(f"  ds_write_b32 v143, v{148+g} offset:{L_XN+80*g}")
    a("  s_mov_b64 exec, -1")
    stub()

    def const_masks(nm, base, vt):
        a(f"  v_and_b32 v{vt}, 1, v0")
        a(f"  v_lshlrev_b32 v{vt}, 4, v{vt}")
        a(f"  v_mov_b32 v{vt+1}, 0xffff")
        a(f"  v_lshlrev_b32 v{vt}, v{vt}, v{vt+1}")
        a(f"  v_bfe_u32 v{vt+1}, v0, 1, {2 if nm == 4 else 1}")
        for j in range(nm):
            a(f"  v_cmp_eq_u32 vcc, {j}, v{vt+1}")
            a(f"  v_cndmask_b32 v{base+j}, 0, v{vt}, vcc")

    a("  s_cmp_eq_u32 s3, 1")
    a("  s_cbranch_scc1 L_aux1")
    a("L_aux0:")
    const_masks(4, 156, 160)
    a("  v_bfe_u32 v11, v0, 3, 1")
    a("  v_lshl_add_u32 v11, v11, 2, v8")
    a("  v_mul_u32_u24 v11, 80, v11")
    a("  s_waitcnt lgkmcnt(0)")
    for i in range(5):
        a(f"  ds_read_b128 v[{120+4*i}:{123+4*i}], v11 offset:{L_XN+16*i}")
    a("  v_lshrrev_b32 v12, 1, v8")
    a("  v_lshlrev_b32 v12, 9, v12")
    a("  v_lshl_add_u32 v12, v9, 5, v12")
    a("  v_and_b32 v13, 1, v8")
    a("  v_lshl_add_u32 v12, v13, 4, v12")
    a("  s_lshl_b32 s12, s11, 10")
    if E1Q:
        a(f"  s_add_u32 s12, s12, {E1Q}")
    a("  v_add_u32 v12, s12, v12")
    a("  v_mov_b32 v14, -2")
    a("  s_waitcnt lgkmcnt(0)")
    stamp(1)
    for t in range(20):
        A = 140 + 4 * (t & 1)
        for j in range(4):
            a(f"  v_and_b32 v{A+j}, v{120+t}, v{156+j}")
        a(f"  s_waitcnt vmcnt({19-t})")
        c = "0" if t == 0 else "v[148:151]"
        a(f"  v_mfma_f32_16x16x32_bf16 v[148:151], v[{A}:{A+3}], v[{40+4*t}:{43+4*t}], {c}")
    for r in range(4):
        a(f"  v_min_u32 v{148+r}, v{148+r}, v14")
    spec_publish(lambda: a("  global_store_dwordx4 v12, v[148:151], s[36:37] sc1"))
    stamp(2)
    a("  s_lshl_b32 s12, s4, 13")
    a("  s_lshl_b32 s13, s6, 9")
    a("  s_add_u32 s12, s12, s13")
    a(f"  s_add_u32 s12, s12, {E1Q+4096}")
    a("  v_lshlrev_b32 v12, 3, v0")
    a("  v_add_u32 v12, s12, v12")
    stamp(3)

    def iss():
        for p in range(8):
            a(f"  global_load_dwordx2 v[{20+2*p}:{21+2*p}], v12, s[36:37] offset:{p*1024-4096} sc1")
    poll_loop(iss, lambda: max_tree(range(20, 36), 40), sleep=cfg.psleep)
    for p in range(1, 8):
        a(f"  v_add_f32 v20, v20, v{20+2*p}")
        a(f"  v_add_f32 v21, v21, v{21+2*p}")
    a("  v_cvt_pk_bf16_f32 v20, v20, v21")
    a("  v_lshlrev_b32 v12, 2, v0")
    a(f"  ds_write_b32 v12, v20 offset:{L_Q}")
    set_lds_flag(F_Q)
    stamp(4)
    stub()
    a("  s_lshl_b32 s12, s4, 1")
    a("  s_add_u32 s12, s12, s6")
    a("  s_lshl_b32 s12, s12, 7")
    a(f"  s_add_u32 s12, s12, {E2T}")
    a("  v_lshl_add_u32 v12, v9, 3, s12")
    wait_lds(F_KI, 1, 16, n=4, sleep=8)
    wait_lds(F_OKB, 1, 16, sleep=2)

    def iss2():
        a("  global_load_dwordx2 v[20:21], v12, s[36:37] sc1")

    def chk2():
        a("  v_max_u32 v22, v20, v21")
        a("  v_cmp_eq_u32 vcc, -1, v22")
    poll_loop(iss2, chk2, sleep=cfg.psleep)
    stamp(5)
    a("  v_mov_b32 v22, v20")
    wave_allreduce_row(22, "v_max_f32")
    a("  v_sub_f32 v23, v20, v22")
    a("  v_mul_f32 v23, 0x3fb8aa3b, v23")
    a("  v_exp_f32 v23, v23")
    a("  v_mul_f32 v23, v23, v21")
    wave_allreduce_row(23)
    a("  v_rcp_f32 v24, v23")
    a("  v_fma_f32 v25, -v23, v24, 1.0")
    a("  v_fmac_f32 v24, v25, v24")
    a("  v_mov_b32 v23, v24")
    a(f"  ds_write_b64 v1, v[22:23] offset:{L_ML}")
    stamp(6)
    stamp_flush()
    a("  s_endpgm")
    stub(True)

    a("L_aux1:")
    const_masks(2, 156, 160)
    a("  v_bfe_u32 v11, v0, 2, 1")
    a("  v_lshl_add_u32 v11, v11, 2, v8")
    a("  v_mul_u32_u24 v11, 80, v11")
    a("  s_waitcnt lgkmcnt(0)")
    for i in range(5):
        a(f"  ds_read_b128 v[{120+4*i}:{123+4*i}], v11 offset:{L_XN+768+16*i}")
    a("  v_lshlrev_b32 v12, 8, v8")
    a("  v_lshl_add_u32 v12, v9, 4, v12")
    a("  s_lshl_b32 s12, s11, 9")
    a(f"  s_add_u32 s12, s12, {E1H}")
    a("  v_add_u32 v12, s12, v12")
    a("  v_mov_b32 v14, -2")
    a("  s_waitcnt lgkmcnt(0)")
    for t in range(20):
        A = 140 + 2 * (t & 1)
        for j in range(2):
            a(f"  v_and_b32 v{A+j}, v{120+t}, v{156+j}")
        a(f"  s_waitcnt vmcnt({19-t})")
        c = "0" if t == 0 else "v[148:151]"
        a(f"  v_mfma_f32_16x16x16_bf16 v[148:151], v[{A}:{A+1}], v[{40+2*t}:{41+2*t}], {c}")
    for r in range(4):
        a(f"  v_min_u32 v{148+r}, v{148+r}, v14")

    def st1():
        a("  s_mov_b64 exec, 0xffffffff")
        a("  global_store_dwordx4 v12, v[148:151], s[36:37] sc1")
        a("  s_mov_b64 exec, -1")
    spec_publish(st1)
    stamp(1)
    a("  s_cmp_lt_u32 s5, 5")
    a("  s_cbranch_scc1 L_aux1_done")
    a("  s_lshl_b32 s12, s4, 12")
    a(f"  s_add_u32 s12, s12, {E1H}")
    a("  v_lshlrev_b32 v12, 3, v0")
    a("  v_add_u32 v12, s12, v12")

    def iss3():
        for p in range(8):
            a(f"  global_load_dwordx2 v[{20+2*p}:{21+2*p}], v12, s[36:37] offset:{p*512} sc1")
    poll_loop(iss3, lambda: max_tree(range(20, 36), 40), sleep=max(cfg.psleep, 4))
    for p in range(1, 8):
        a(f"  v_add_f32 v20, v20, v{20+2*p}")
        a(f"  v_add_f32 v21, v21, v{21+2*p}")
    a("  v_max_f32 v20, 0, v20")
    a("  v_max_f32 v21, 0, v21")
    a("  v_cvt_pk_bf16_f32 v20, v20, v21")
    a("  v_lshlrev_b32 v12, 2, v0")
    a(f"  ds_write_b32 v12, v20 offset:{L_HB}")
    set_lds_flag(F_H)
    a("L_aux1_done:")
    stamp(2)
    stamp_flush()
    a("  s_endpgm")
    stub(True)

    a("L_aux2:")
    for r in range(4):
        a(f"  v_mov_b32 v{16+r}, -1")
    a("  v_lshlrev_b32 v3, 4, v0")
    a("  s_lshl_b32 s13, s4, 12")
    a("  s_lshl_b32 s8, s4, 3")
    a("  v_mov_b32 v9, s8")
    a("  s_cmp_gt_u32 s5, 1")
    a("  s_cbranch_scc1 L_a2_poll")
    a("  s_cmp_eq_u32 s5, 1")
    a("  s_cbranch_scc1 L_a2_late")
    a("  s_lshl_b32 s12, s4, 13")
    a(f"  s_add_u32 s12, s12, {E1Q+4096}")
    a("  v_add_u32 v4, s12, v3")
    a(f"  s_add_u32 s12, s13, {E1H+4096}")
    a("  v_add_u32 v5, s12, v3")
    a("  s_waitcnt lgkmcnt(0)")
    stamp(0)
    for i in range(8):
        a(f"  global_store_dwordx4 v4, v[16:19], s[36:37] offset:{1024*i-4096} sc1")
    for i in range(4):
        a(f"  global_store_dwordx4 v5, v[16:19], s[36:37] offset:{1024*i-4096} sc1")
    a("  s_branch L_a2_flag")
    a("L_a2_late:")
    e3_lane_off(10, 11)
    a(f"  s_add_u32 s12, s13, {E2O+4096}")
    a("  v_add_u32 v5, s12, v3")
    a("  s_lshl_b32 s12, s4, 8")
    a(f"  s_add_u32 s12, s12, {E2T}")
    a("  v_add_u32 v7, s12, v3")
    a("  v_add_u32 v9, 4, v9")
    a("  s_waitcnt lgkmcnt(0)")
    stamp(0)
    for i in range(4):
        a(f"  global_store_dwordx4 v5, v[16:19], s[36:37] offset:{1024*i-4096} sc1")
    a("  s_mov_b64 exec, 0xffff")
    a("  global_store_dwordx4 v7, v[16:19], s[36:37] sc1")
    a("  s_mov_b64 exec, -1")
    a("  s_mov_b32 s14, 0")
    a("L_clr_loop:")
    tile_params(14)
    a("  s_cmp_eq_u32 s72, 0")
    a("  s_cbranch_scc1 L_clr_skip")
    a(f"  s_add_u32 s70, s70, {E3}")
    a("  v_add_u32 v8, s70, v10")
    a("  global_store_dwordx4 v8, v[16:19], s[36:37] sc1")
    a("L_clr_skip:")
    a("  s_add_u32 s14, s14, 1")
    a("  s_cmp_lt_u32 s14, 30")
    a("  s_cbranch_scc1 L_clr_loop")
    a("L_a2_flag:")
    a("  s_waitcnt vmcnt(0)")
    a("  s_mov_b64 exec, 1")
    a("  global_store_dword v9, v2, s[34:35] sc1")
    a("  s_mov_b64 exec, -1")
    stamp(1)
    a("  s_branch L_a2_p2")
    a("L_a2_poll:")
    a(f"  s_sleep {cfg.fsleep}")
    a("  s_waitcnt lgkmcnt(0)")
    a("L_a2_p2:")
    a("  v_mov_b32 v3, s8")
    L = lab("fl")
    D = lab("fld")
    a("  s_mov_b32 s9, 0")
    a(f"{L}:")
    a("  global_load_dwordx2 v[16:17], v3, s[34:35] sc1")
    a("  s_waitcnt vmcnt(0)")
    a(f"  ds_write_b64 v1, v[16:17] offset:{F_OKA}")
    a("  v_and_b32 v16, v16, v17")
    a("  v_readfirstlane_b32 s12, v16")
    a("  s_cmp_lg_u32 s12, 0")
    a(f"  s_cbranch_scc1 {D}")
    a(f"  s_sleep {max(cfg.psleep, 4)}")
    a("  s_add_u32 s9, s9, 1")
    a(f"  s_cmp_lt_u32 s9, {cfg.spin_g}")
    a(f"  s_cbranch_scc1 {L}")
    a(f"{D}:")
    stamp(2)
    stamp_flush()
    a("  s_endpgm")
    stub(True)

    a("L_aux3:")
    if cfg.walk:
        if cfg.cpf:
            a("  s_waitcnt vmcnt(0)")
        a("  s_branch L_w0")
        a("L_wdone:")
    a("  s_waitcnt lgkmcnt(0)")
    stamp(0)
    a("  s_cmp_ge_u32 s11, 160")
    a("  s_cbranch_scc1 L_aux3_done")
    a("  s_cmp_ge_u32 s11, 80")
    a("  s_cselect_b32 s13, 1, 0")
    a("  s_mul_i32 s14, s13, 80")
    a("  s_sub_u32 s14, s11, s14")
    a("  v_and_b32 v3, 1, v0")
    a("  v_lshrrev_b32 v4, 4, v0")
    a("  v_lshl_add_u32 v5, v3, 2, v4")
    a("  s_mul_i32 s15, s13, 640")
    a("  s_lshl_b32 s8, s14, 3")
    a("  s_add_u32 s15, s15, s8")
    a("  v_add_u32 v5, s15, v5")
    a("  v_lshlrev_b32 v5, 1, v5")
    a("  global_load_ushort v6, v5, s[16:17]")
    a("  v_lshrrev_b32 v7, 1, v0")
    a("  v_mul_u32_u24 v8, 2560, v7")
    a("  v_lshl_add_u32 v8, v3, 4, v8")
    a(f"  s_mul_i32 s15, s13, {E3B}")
    a("  s_lshl_b32 s8, s14, 5")
    a("  s_add_u32 s15, s15, s8")
    a(f"  s_add_u32 s15, s15, {E3}")
    a("  v_add_u32 v8, s15, v8")
    for i in range(1, 6):
        a(f"  v_add_u32 v{8+i}, {81920*i}, v8")
    a("  v_cmp_gt_u32 s[48:49], 22, v7")
    a("  v_cndmask_b32 v13, v12, v13, s[48:49]")
    wait_lds(F_KI, 1, 16, n=4, sleep=8)
    a("  v_lshlrev_b32 v40, 2, v0")

    def iss5():
        a("  global_load_dword v16, v40, s[34:35] sc1")

    def chk5():
        a("  v_cmp_ne_u32 vcc, 1, v16")
    poll_loop(iss5, chk5, sleep=4)
    L = lab("wo")
    D = lab("wod")
    a("  s_mov_b32 s9, 0")
    a(f"{L}:")
    a(f"  ds_read_b32 v16, v1 offset:{CNT_O}")
    a("  s_waitcnt lgkmcnt(0)")
    a("  v_readfirstlane_b32 s8, v16")
    a("  s_cmp_ge_u32 s8, 4")
    a(f"  s_cbranch_scc1 {D}")
    a("  s_sleep 4")
    a("  s_add_u32 s9, s9, 1")
    a(f"  s_cmp_lt_u32 s9, {SPIN_L}")
    a(f"  s_cbranch_scc1 {L}")
    a(f"{D}:")
    stamp(1)

    def iss6():
        for i in range(6):
            a(f"  global_load_dwordx4 v[{16+4*i}:{19+4*i}], v{8+i}, s[36:37] sc1")
    poll_loop(iss6, lambda: max_tree(range(16, 40), 44), sleep=0)
    stamp(2)
    for r in range(4):
        a(f"  v_cndmask_b32 v{36+r}, 0, v{36+r}, s[48:49]")
    for r in range(4):
        a(f"  v_add_f32 v{16+r}, v{16+r}, v{20+r}")
        a(f"  v_add_f32 v{24+r}, v{24+r}, v{28+r}")
        a(f"  v_add_f32 v{32+r}, v{32+r}, v{36+r}")
    for r in range(4):
        a(f"  v_add_f32 v{16+r}, v{16+r}, v{24+r}")
    a("  v_permlane32_swap_b32 v16, v18")
    a("  v_permlane32_swap_b32 v17, v19")
    a("  v_permlane32_swap_b32 v32, v34")
    a("  v_permlane32_swap_b32 v33, v35")
    a("  v_add_f32 v16, v16, v18")
    a("  v_add_f32 v17, v17, v19")
    a("  v_add_f32 v32, v32, v34")
    a("  v_add_f32 v33, v33, v35")
    a("  v_permlane16_swap_b32 v16, v17")
    a("  v_permlane16_swap_b32 v32, v33")
    a("  v_add_f32 v16, v16, v17")
    a("  v_add_f32 v32, v32, v33")
    for r in (8, 4, 2):
        a(f"  v_add_f32_dpp v16, v16, v16 row_ror:{r} row_mask:0xf bank_mask:0xf")
        a(f"  v_add_f32_dpp v32, v32, v32 row_ror:{r} row_mask:0xf bank_mask:0xf")
    rne(16, 16)
    rne(32, 32)
    a("  v_mul_f32 v33, 0xbfb8aa3b, v32")
    a("  v_exp_f32 v33, v33")
    a("  v_add_f32 v33, 1.0, v33")
    a("  v_rcp_f32 v34, v33")
    a("  v_mul_f32 v35, v32, v34")
    a("  v_fma_f32 v36, -v35, v33, v32")
    a("  v_fmac_f32 v35, v36, v34")
    rne(35, 35)
    a("  v_mul_f32 v16, v16, v35")
    rne(16, 16)
    a("  v_lshlrev_b32 v6, 16, v6")
    a("  v_add_f32 v16, v6, v16")
    a("  v_cvt_pk_bf16_f32 v16, v16, v16")
    a("  s_mov_b32 exec_lo, 0x00030003")
    a("  s_mov_b32 exec_hi, 0x00030003")
    a("  global_store_short v5, v16, s[32:33] sc1")
    a("  s_mov_b64 exec, -1")
    a("L_aux3_done:")
    stamp(3)
    stamp_flush()
    a("  s_endpgm")
    stub(True)

    a("L_kwave:")
    a("  v_and_b32 v4, 15, v0")
    a("  v_lshlrev_b32 v5, 4, v4")
    a("  s_lshl_b32 s14, s11, 5")
    a("  s_lshl_b32 s15, s10, 3")
    a("  s_add_u32 s14, s14, s15")
    a(f"  s_add_u32 s14, s14, {E2T}")
    a("  v_mov_b32 v12, s14")
    a("  v_bfrev_b32 v11, v4")
    a("  v_lshrrev_b32 v11, 26, v11")
    a("  v_lshrrev_b32 v13, 4, v0")
    a("  v_lshl_add_u32 v11, v13, 7, v11")
    a("  s_lshl_b32 s14, s10, 9")
    a("  v_add_u32 v11, s14, v11")
    a("  v_and_b32 v6, 2, v0")
    a("  v_cmp_ne_u32 s[48:49], 0, v6")
    a("  v_and_b32 v6, 1, v0")
    a("  v_cmp_ne_u32 s[50:51], 0, v6")
    a("  v_mov_b32 v14, -2")
    wait_lds(F_Q, 1, 6, sleep=1)
    a(f"  ds_read_b128 v[144:147], v5 offset:{L_Q}")
    a("  s_waitcnt lgkmcnt(0)")
    stamp(2)
    R = lambda t: 16 + 4 * t
    for G in range(8):
        t0 = 4 * G
        a(f"  s_waitcnt vmcnt({28-4*G})")
        for k in range(4):
            for t in range(t0, t0 + 4):
                c = "0" if k == 0 else f"v{R(t)}"
                a(f"  v_dot2_f32_bf16 v{R(t)}, v{R(t)+k}, v{144+k}, {c}")
        for t in (t0, t0 + 2):
            a(f"  v_add_f32_dpp v{R(t)}, v{R(t)}, v{R(t)} row_ror:8 row_mask:0xf bank_mask:0x3")
            a(f"  v_add_f32_dpp v{R(t)}, v{R(t+1)}, v{R(t+1)} row_ror:8 row_mask:0xf bank_mask:0xc")
        a(f"  v_add_f32_dpp v{R(t0)}, v{R(t0)}, v{R(t0)} row_half_mirror row_mask:0xf bank_mask:0x5")
        a(f"  v_add_f32_dpp v{R(t0)}, v{R(t0+2)}, v{R(t0+2)} row_half_mirror row_mask:0xf bank_mask:0xa")
        if G in (2, 6):
            stub()
    for i in range(4):
        x, y = R(8 * i), R(8 * i + 4)
        a(f"  v_cndmask_b32 v{x+1}, v{x}, v{y}, s[48:49]")
        a(f"  v_cndmask_b32 v{x+2}, v{y}, v{x}, s[48:49]")
    for i in range(4):
        x = R(8 * i)
        a(f"  v_add_f32_dpp v{x}, v{x+2}, v{x+1} quad_perm:[2,3,0,1] row_mask:0xf bank_mask:0xf")
    for i in range(2):
        x, y = R(16 * i), R(16 * i + 8)
        a(f"  v_cndmask_b32 v{x+1}, v{x}, v{y}, s[50:51]")
        a(f"  v_cndmask_b32 v{x+2}, v{y}, v{x}, s[50:51]")
    for i in range(2):
        x = R(16 * i)
        a(f"  v_add_f32_dpp v{x}, v{x+2}, v{x+1} quad_perm:[1,0,3,2] row_mask:0xf bank_mask:0xf")
    S0, S1 = R(0), R(16)
    a(f"  v_cvt_pk_bf16_f32 v6, v{S0}, v{S1}")
    a("  v_lshlrev_b32 v7, 16, v6")
    a("  v_and_b32 v8, 0xffff0000, v6")
    a("  v_mul_f32 v7, 0x3db504f3, v7")
    a("  v_mul_f32 v8, 0x3db504f3, v8")
    a("  v_cvt_pk_bf16_f32 v6, v7, v8")
    a("  v_lshlrev_b32 v148, 16, v6")
    a("  v_and_b32 v149, 0xffff0000, v6")
    a("  v_max_f32 v150, v148, v149")
    wave_allreduce_row(150, "v_max_f32")
    a("  v_mov_b32 v10, v150")
    a("  v_permlane16_swap_b32 v150, v10")
    a("  v_max_f32 v150, v150, v10")
    a("  v_mov_b32 v10, v150")
    a("  v_permlane32_swap_b32 v150, v10")
    a("  v_max_f32 v150, v150, v10")
    a("  v_sub_f32 v7, v148, v150")
    a("  v_sub_f32 v8, v149, v150")
    a("  v_mul_f32 v7, 0x3fb8aa3b, v7")
    a("  v_mul_f32 v8, 0x3fb8aa3b, v8")
    a("  v_exp_f32 v7, v7")
    a("  v_exp_f32 v8, v8")
    a("  v_add_f32 v151, v7, v8")
    wave_allreduce_row(151)
    a("  v_mov_b32 v10, v151")
    a("  v_permlane16_swap_b32 v151, v10")
    a("  v_add_f32 v151, v151, v10")
    a("  v_mov_b32 v10, v151")
    a("  v_permlane32_swap_b32 v151, v10")
    a("  v_add_f32 v151, v151, v10")
    a("  v_min_u32 v150, v150, v14")
    a("  v_min_u32 v151, v151, v14")
    wait_lds(F_OKB, 1, 13, sleep=1)
    a("  s_mov_b64 exec, 1")
    a("  global_store_dwordx2 v12, v[150:151], s[36:37] sc1")
    a("  s_mov_b64 exec, -1")
    stamp(3)
    stub()
    a("  s_lshl_b32 s14, s5, 2")
    a("  s_add_u32 s14, s14, s10")
    tile_params(14)
    a("  v_lshrrev_b32 v8, 4, v0")
    a("  v_and_b32 v9, 15, v0")
    a("  v_mul_u32_u24 v10, 8*1280, v8")
    a("  v_lshl_add_u32 v10, v9, 4, v10")
    e3_lane_off(12, 13)
    a(f"  s_add_u32 s70, s70, {E3}")
    a("  v_add_u32 v12, s70, v12")
    a("  s_cmp_eq_u32 s72, 1")
    a("  s_cselect_b32 s44, s24, s30")
    a("  s_cselect_b32 s45, s25, s31")
    a("  s_and_b32 s45, s45, 0xffff")
    a(f"  s_mov_b32 s47, {1728*1280}")
    a(f"  s_cselect_b32 s46, {4096*1280}, s47")
    a("  s_mov_b32 s47, 0x20000")
    a("  s_add_u32 s13, s71, 5120")

    def tile_loads():
        for i in range(8):
            so = "s71" if i < 4 else "s13"
            a(f"  buffer_load_dwordx4 v[{16+4*i}:{19+4*i}], v10, s[44:47], {so} offen offset:{(i&3)*1280} {cfg.nt_wo}")
    L = lab("ml")
    D = lab("mld")
    a("  s_mov_b32 s9, 0")
    a(f"{L}:")
    a(f"  ds_read_b64 v[150:151], v1 offset:{L_ML}")
    a("  s_waitcnt lgkmcnt(0)")
    a("  v_readfirstlane_b32 s8, v151")
    a("  s_cmp_lg_u32 s8, 0")
    a(f"  s_cbranch_scc1 {D}")
    a("  s_sleep 1")
    a("  s_add_u32 s9, s9, 1")
    a(f"  s_cmp_lt_u32 s9, {SPIN_L}")
    a(f"  s_cbranch_scc1 {L}")
    a(f"{D}:")
    stamp(4)
    a("  v_sub_f32 v7, v148, v150")
    a("  v_sub_f32 v6, v149, v150")
    a("  v_mul_f32 v7, 0x3fb8aa3b, v7")
    a("  v_mul_f32 v6, 0x3fb8aa3b, v6")
    a("  v_exp_f32 v7, v7")
    a("  v_exp_f32 v6, v6")
    a("  v_mul_f32 v7, v7, v151")
    a("  v_mul_f32 v6, v6, v151")
    a("  v_cvt_pk_bf16_f32 v7, v7, v7")
    a("  v_cvt_pk_bf16_f32 v6, v6, v6")
    a(f"  ds_write_b32 v11, v7 offset:{L_P}")
    a(f"  ds_write_b32 v11, v6 offset:{L_P+64}")
    a("  s_lshl_b32 s12, s10, 2")
    a("  v_mov_b32 v13, s12")
    a(f"  ds_write_b32 v13, v2 offset:{F_P}")
    stamp(5)
    a("  s_cmp_eq_u32 s72, 0")
    a("  s_cbranch_scc1 L_k_done")
    LG = lab("tg")
    g1 = cfg.gate_wo
    g2 = cfg.gate_w2
    if g1 != g2:
        a(f"  s_cmp_eq_u32 s72, {2 if g1 else 1}")
        a(f"  s_cbranch_scc1 {LG}")
    if g1 or g2:
        wait_lds(F_VI, 1, 144, n=4, sleep=2)
    a(f"{LG}:")
    tile_loads()
    a("  v_and_b32 v3, 3, v0")
    a("  v_lshlrev_b32 v3, 9, v3")
    a("  v_bfe_u32 v4, v0, 3, 1")
    a("  v_lshl_add_u32 v3, v4, 11, v3")
    a("  v_bfe_u32 v4, v0, 2, 1")
    a("  v_lshl_add_u32 v3, v4, 4, v3")
    a("  v_lshl_add_u32 v3, v8, 5, v3")
    a("  s_lshl_b32 s14, s4, 12")
    a("  s_lshl_b32 s15, s74, 7")
    a("  s_add_u32 s14, s14, s15")
    a(f"  s_add_u32 s14, s14, {E2O}")
    a("  v_add_u32 v3, s14, v3")
    a("  v_bfe_u32 v4, v0, 3, 1")
    a("  v_lshlrev_b32 v4, 7, v4")
    a("  v_lshl_add_u32 v4, v8, 4, v4")
    a("  s_lshl_b32 s14, s74, 6")
    a("  v_add_u32 v4, s14, v4")
    a("  v_bfe_u32 v5, v0, 4, 1")
    a("  v_cmp_eq_u32 s[48:49], 0, v5")
    a("  v_bfe_u32 v5, v0, 2, 1")
    a("  v_cmp_eq_u32 s[52:53], 0, v5")
    a("  s_mov_b32 s14, 0x05040100")
    a("  s_mov_b32 s15, 0x07060302")
    a("  s_waitcnt vmcnt(0)")
    stamp(6)
    for d in range(4):
        for q in range(4):
            ev = 16 + 4 * (2 * q) + d
            od = 16 + 4 * (2 * q + 1) + d
            a(f"  v_perm_b32 v{48+4*(2*d)+q}, v{od}, v{ev}, s14")
            a(f"  v_perm_b32 v{48+4*(2*d+1)+q}, v{od}, v{ev}, s15")
    stub()
    a("  s_cmp_eq_u32 s72, 1")
    a("  s_cbranch_scc1 L_t_wo")
    wait_lds(F_H, 1, 144, sleep=2)
    a(f"  ds_read_b128 v[112:115], v4 offset:{L_HB}")
    a("  s_waitcnt lgkmcnt(0)")
    a("  s_branch L_t_mm")
    a("L_t_wo:")

    def iss7():
        a("  global_load_dwordx4 v[80:83], v3, s[36:37] sc1")
    poll_loop(iss7, lambda: max_tree(range(80, 84), 84), sleep=0)
    stamp(7)
    for r in range(4):
        a(f"  v_add_f32_dpp v{80+r}, v{80+r}, v{80+r} quad_perm:[1,0,3,2] row_mask:0xf bank_mask:0xf")
    for r in range(4):
        a(f"  v_add_f32_dpp v{80+r}, v{80+r}, v{80+r} quad_perm:[2,3,0,1] row_mask:0xf bank_mask:0xf")
    a("  v_cvt_pk_bf16_f32 v112, v80, v81")
    a("  v_cvt_pk_bf16_f32 v113, v82, v83")
    a("  v_mov_b32 v114, v112")
    a("  v_mov_b32 v115, v113")
    a("  v_mov_b32_dpp v84, v112 row_half_mirror row_mask:0xf bank_mask:0xf")
    a("  v_mov_b32_dpp v85, v113 row_half_mirror row_mask:0xf bank_mask:0xf")
    a("  v_cndmask_b32 v112, v84, v112, s[52:53]")
    a("  v_cndmask_b32 v113, v85, v113, s[52:53]")
    a("  v_cndmask_b32 v114, v114, v84, s[52:53]")
    a("  v_cndmask_b32 v115, v115, v85, s[52:53]")
    a("L_t_mm:")
    for x in range(8):
        a(f"  v_mfma_f32_16x16x32_bf16 v[{116+4*x}:{119+4*x}], v[112:115], v[{48+4*x}:{51+4*x}], 0")
    for r in range(4):
        a(f"  v_cndmask_b32 v{80+r}, v{116+4*(4+r)}, v{116+4*r}, s[48:49]")
    for r in range(4):
        a(f"  v_min_u32 v{80+r}, v{80+r}, v14")
    a("  global_store_dwordx4 v12, v[80:83], s[36:37] sc1")
    a("L_k_done:")
    stamp(8)
    stamp_flush()
    a("  s_endpgm")
    stub(True)

    a("L_vwave:")
    const_masks(4, 160, 6)
    a("  v_lshrrev_b32 v6, 4, v0")
    a("  v_lshlrev_b32 v6, 7, v6")
    a("  s_lshl_b32 s12, s10, 9")
    a("  v_add_u32 v6, s12, v6")
    a("  v_and_b32 v7, 15, v0")
    a("  v_lshlrev_b32 v7, 5, v7")
    a("  v_bfe_u32 v8, v0, 4, 1")
    a("  v_lshl_add_u32 v7, v8, 4, v7")
    a("  v_add_u32 v7, s12, v7")
    a("  s_lshl_b32 s12, s11, 9")
    a(f"  s_add_u32 s12, s12, {E2O}")
    a("  v_lshl_add_u32 v9, v0, 4, s12")
    a("  v_lshlrev_b32 v10, 4, v0")
    a("  v_mov_b32 v11, -2")
    wait_lds(F_P, 4, 8, sleep=1)
    a(f"  ds_read_b128 v[144:147], v6 offset:{L_P}")
    stamp(2)
    for q in range(8):
        pb = 144 + 4 * (q & 1)
        if q < 7:
            nb = 144 + 4 * ((q + 1) & 1)
            a(f"  ds_read_b128 v[{nb}:{nb+3}], v6 offset:{L_P+16*(q+1)}")
            a("  s_waitcnt lgkmcnt(1)")
        else:
            a("  s_waitcnt lgkmcnt(0)")
        for u in range(4):
            t = 4 * q + u
            A = 152 + 4 * (t & 1)
            for j in range(4):
                a(f"  v_and_b32 v{A+j}, v{pb+u}, v{160+j}")
            a(f"  s_waitcnt vmcnt({31-t})")
            c = "0" if t == 0 else "v[164:167]"
            a(f"  v_mfma_f32_16x16x32_bf16 v[164:167], v[{A}:{A+3}], v[{16+4*t}:{19+4*t}], {c}")
        if q == 3:
            stub()
    stamp(3)
    a("  s_mov_b64 exec, 0xffffffff")
    a(f"  ds_write_b128 v7, v[164:167] offset:{L_O}")
    a("  s_mov_b64 exec, 1")
    a(f"  ds_add_rtn_u32 v8, v1, v2 offset:{CNT_O}")
    a("  s_mov_b64 exec, -1")
    a("  s_waitcnt lgkmcnt(0)")
    a("  v_readfirstlane_b32 s8, v8")
    a("  s_cmp_eq_u32 s8, 3")
    a("  s_cbranch_scc0 L_v_done")
    a("  s_mov_b64 exec, 0xffffffff")
    for w in range(4):
        a(f"  ds_read_b128 v[{16+4*w}:{19+4*w}], v10 offset:{L_O+512*w}")
    a("  s_waitcnt lgkmcnt(0)")
    for r in range(4):
        a(f"  v_add_f32 v{16+r}, v{16+r}, v{20+r}")
        a(f"  v_add_f32 v{24+r}, v{24+r}, v{28+r}")
    for r in range(4):
        a(f"  v_add_f32 v{16+r}, v{16+r}, v{24+r}")
    for r in range(4):
        a(f"  v_min_u32 v{16+r}, v{16+r}, v11")
    a("  global_store_dwordx4 v9, v[16:19], s[36:37] sc1")
    a("  s_mov_b64 exec, -1")
    a("L_v_done:")
    stamp(4)
    stamp_flush()
    a("  s_endpgm")
    if cfg.walk:
        a(f"L_w{nstub[0]}:")
        a("  s_branch L_wdone")
    a("L_end:")
    a("  s_endpgm")
    a('.section .rodata,"a"')
    a(".p2align 6")
    a(f".amdhsa_kernel {NAME}_kernel")
    a("  .amdhsa_next_free_vgpr 168")
    a("  .amdhsa_next_free_sgpr 96")
    a("  .amdhsa_accum_offset 168")
    a("  .amdhsa_group_segment_fixed_size 0")
    a("  .amdhsa_kernarg_size 88")
    a("  .amdhsa_user_sgpr_count 2")
    a("  .amdhsa_user_sgpr_kernarg_segment_ptr 1")
    a("  .amdhsa_system_sgpr_workgroup_id_x 1")
    a(".end_amdhsa_kernel")
    return a.resolve() + "\n"


if __name__ == "__main__":
    out = sys.argv[1] if len(sys.argv) > 1 else f"cdna_kernels/{NAME}.s"

    class C(Cfg):
        pass
    for kv in sys.argv[2:]:
        k, v = kv.split("=")
        cur = getattr(C, k)
        if isinstance(cur, bool):
            v = v in ("1", "True", "true")
        elif isinstance(cur, int):
            v = int(v)
        setattr(C, k, v)
    open(out, "w").write(gen(C))
```

```python
import sys, os
sys.path.insert(0, "work")
from asmlib import Asm

NAME = "recurrent_scan__sliding_block_cached__dense_activation_relu__decode"

E1Q = 0x0
E1H = 0x40000
E2T = 0x60000
E2O = 0x64000
E3 = 0x90000
E3B = 182 * 2560
TS = 0x400000

F_Q, F_TAG, F_H, CNT_O = 0, 4, 12, 16
F_P, F_KI, F_VI = 32, 48, 64
L_ML = 96
L_Q, L_HB, L_XN, L_P, L_O = 256, 512, 1024, 2560, 4608
LDS_BYTES = 8192

SPIN_L = 1 << 21


class Cfg:
    nt_kv = "nt"
    nt_w = "nt"
    nt_wo = "nt"
    stamps = False
    prio = True
    win = 8
    spin_g = 1 << 17
    cpf = True
    walk = True
    gate_wo = True
    gate_w2 = True
    psleep = 2
    fsleep = 20


def gen(cfg=Cfg):
    a = Asm()
    uid = [0]
    nstub = [0]

    def lab(p):
        uid[0] += 1
        return f"L_{p}_{uid[0]}"

    def stub(natural=False):
        if not cfg.walk:
            return
        k = nstub[0]
        nstub[0] += 1
        if not natural:
            a(f"  s_branch L_wsk{k}")
        a(f"L_w{k}:")
        a(f"  s_branch L_w{k+1}")
        if not natural:
            a(f"L_wsk{k}:")

    def stamp(i):
        if not cfg.stamps:
            return
        a("  s_memrealtime s[62:63]")
        a("  s_waitcnt lgkmcnt(0)")
        a(f"  v_writelane_b32 v15, s62, {i}")

    def stamp_flush():
        if not cfg.stamps:
            return
        a("  s_mul_i32 s62, s2, 12")
        a("  s_add_u32 s62, s62, s3")
        a("  s_lshl_b32 s62, s62, 6")
        a(f"  s_add_u32 s62, s62, {TS}")
        a("  v_lshlrev_b32 v14, 2, v0")
        a("  v_add_u32 v14, s62, v14")
        a("  s_mov_b64 exec, 0xffff")
        a("  global_store_dword v14, v15, s[36:37]")
        a("  s_mov_b64 exec, -1")

    def srd(base, lo, size):
        a(f"  s_mov_b32 s{base}, s{lo}")
        a(f"  s_and_b32 s{base+1}, s{lo+1}, 0xffff")
        a(f"  s_mov_b32 s{base+2}, {size}")
        a(f"  s_mov_b32 s{base+3}, 0x20000")

    def wait_lds(off, vz, vt, n=1, sleep=2):
        L = lab("wl")
        D = lab("wld")
        a("  s_mov_b32 s9, 0")
        a(f"{L}:")
        if n == 1:
            a(f"  ds_read_b32 v{vt}, v{vz} offset:{off}")
            a("  s_waitcnt lgkmcnt(0)")
        else:
            a(f"  ds_read_b128 v[{vt}:{vt+3}], v{vz} offset:{off}")
            a("  s_waitcnt lgkmcnt(0)")
            a(f"  v_and_b32 v{vt}, v{vt}, v{vt+1}")
            a(f"  v_and_b32 v{vt+2}, v{vt+2}, v{vt+3}")
            a(f"  v_and_b32 v{vt}, v{vt}, v{vt+2}")
        a(f"  v_readfirstlane_b32 s8, v{vt}")
        a("  s_cmp_lg_u32 s8, 0")
        a(f"  s_cbranch_scc1 {D}")
        if sleep:
            a(f"  s_sleep {sleep}")
        a("  s_add_u32 s9, s9, 1")
        a(f"  s_cmp_lt_u32 s9, {SPIN_L}")
        a(f"  s_cbranch_scc1 {L}")
        a(f"{D}:")

    def set_lds_flag(off, vz=1, vone=2):
        a(f"  ds_write_b32 v{vz}, v{vone} offset:{off}")

    def wave_allreduce_row(v, op="v_add_f32"):
        for r in (8, 4, 2, 1):
            a(f"  {op}_dpp v{v}, v{v}, v{v} row_ror:{r} row_mask:0xf bank_mask:0xf")

    def rne(dst, src):
        a(f"  v_cvt_pk_bf16_f32 v{dst}, v{src}, v{src}")
        a(f"  v_lshlrev_b32 v{dst}, 16, v{dst}")

    def get_tag(vt):
        wait_lds(F_TAG, 1, vt, sleep=1)
        a("  s_mov_b32 s88, s8")
        for i in range(4):
            a(f"  s_bfe_u32 s{80+i}, s8, {(8 << 16) | (8 * i)}")
            a(f"  s_sub_u32 s{84+i}, 0x80, s{80+i}")

    def tag4(base, vff):
        for r in range(4):
            a(f"  v_add_u32 v{base+r}, s{84+r}, v{base+r}")
        for r in range(4):
            a(f"  v_bfi_b32 v{base+r}, v{vff}, s{80+r}, v{base+r}")

    def chk_tags(pairs, t):
        first = True
        k = 0
        while k < len(pairs):
            if first:
                a(f"  v_xor_b32 v{t}, {pairs[k][1]}, v{pairs[k][0]}")
                k += 1
                first = False
            elif len(pairs) - k >= 2:
                a(f"  v_xor_b32 v{t+1}, {pairs[k][1]}, v{pairs[k][0]}")
                a(f"  v_xor_b32 v{t+2}, {pairs[k+1][1]}, v{pairs[k+1][0]}")
                a(f"  v_or3_b32 v{t}, v{t}, v{t+1}, v{t+2}")
                k += 2
            else:
                a(f"  v_xor_b32 v{t+1}, {pairs[k][1]}, v{pairs[k][0]}")
                a(f"  v_or_b32 v{t}, v{t}, v{t+1}")
                k += 1
        a(f"  v_and_b32 v{t}, 0xff, v{t}")
        a(f"  v_cmp_ne_u32 vcc, 0, v{t}")

    def lane_tags(vd, vt):
        a(f"  v_and_b32 v{vt}, 1, v0")
        a(f"  v_lshlrev_b32 v{vt}, 4, v{vt}")
        a(f"  v_lshrrev_b32_e64 v{vd}, v{vt}, s88")
        a(f"  v_lshrrev_b32 v{vd+1}, 8, v{vd}")

    def poll_loop(issue, check, sleep=0):
        L = lab("pl")
        D = lab("pld")
        a("  s_mov_b32 s9, 0")
        a(f"{L}:")
        issue()
        a("  s_waitcnt vmcnt(0)")
        check()
        a(f"  s_cbranch_vccz {D}")
        if sleep:
            a(f"  s_sleep {sleep}")
        a("  s_add_u32 s9, s9, 1")
        a(f"  s_cmp_lt_u32 s9, {cfg.spin_g}")
        a(f"  s_cbranch_scc1 {L}")
        a(f"{D}:")

    def max_tree(regs, t):
        regs = list(regs)
        k = 0
        while len(regs) > 1:
            new = []
            i = 0
            while i < len(regs):
                if len(regs) - i >= 3:
                    a(f"  v_max3_u32 v{t+k}, v{regs[i]}, v{regs[i+1]}, v{regs[i+2]}")
                    new.append(t + k); k += 1; i += 3
                elif len(regs) - i == 2:
                    a(f"  v_max_u32 v{t+k}, v{regs[i]}, v{regs[i+1]}")
                    new.append(t + k); k += 1; i += 2
                else:
                    new.append(regs[i]); i += 1
            regs = new
        a(f"  v_cmp_eq_u32 vcc, -1, v{regs[0]}")

    def tile_params(si):
        a(f"  s_sub_u32 s75, s{si}, 20")
        a(f"  s_cmp_lt_u32 s{si}, 20")
        a(f"  s_cselect_b32 s75, s{si}, s75")
        a("  s_cselect_b32 s76, 2, 1")
        a("  s_cselect_b32 s72, 1, 2")
        a("  s_cselect_b32 s70, 0, 128")
        a("  s_lshr_b32 s73, s75, s76")
        a("  s_lshl_b32 s74, s73, s76")
        a("  s_sub_u32 s74, s75, s74")
        a("  s_lshl_b32 s75, s4, s76")
        a("  s_add_u32 s75, s75, s74")
        a("  s_add_u32 s70, s70, s75")
        a("  s_mul_i32 s70, s70, 2560")
        a("  s_mul_i32 s71, s75, 32*1280")
        a("  s_lshl_b32 s75, s73, 9")
        a("  s_add_u32 s70, s70, s75")
        a("  s_lshl_b32 s75, s73, 8")
        a("  s_add_u32 s71, s71, s75")
        a("  s_cmp_ge_u32 s73, 5")
        a("  s_cselect_b32 s75, 0, 2")
        a("  s_cmp_ge_u32 s4, 27")
        a("  s_cselect_b32 s75, 0, s75")
        a("  s_cmp_eq_u32 s72, 2")
        a("  s_cselect_b32 s72, s75, s72")

    def e3_lane_off(vd, vt):
        a(f"  v_lshrrev_b32 v{vd}, 5, v0")
        a(f"  v_mul_u32_u24 v{vd}, {E3B}, v{vd}")
        a(f"  v_and_b32 v{vt}, 15, v0")
        a(f"  v_lshl_add_u32 v{vd}, v{vt}, 5, v{vd}")
        a(f"  v_bfe_u32 v{vt}, v0, 4, 1")
        a(f"  v_lshl_add_u32 v{vd}, v{vt}, 4, v{vd}")

    a(f"; @launch grid=(256,1,1) block=(768,1,1) lds={LDS_BYTES}")
    a('.amdgcn_target "amdgcn-amd-amdhsa--gfx950"')
    a(".text")
    a(f".globl {NAME}_kernel")
    a(".p2align 8")
    a(f".type {NAME}_kernel,@function")
    a(f"{NAME}_kernel:")
    a("  s_cmp_ge_u32 s2, 256")
    a("  s_cbranch_scc1 L_end")
    a("  s_load_dwordx16 s[16:31], s[0:1], 0")
    a("  s_load_dwordx4 s[32:35], s[0:1], 64")
    a("  s_load_dwordx2 s[36:37], s[0:1], 80")
    a("  v_lshrrev_b32 v1, 6, v0")
    a("  v_and_b32 v0, 63, v0")
    a("  v_readfirstlane_b32 s3, v1")
    a("  s_lshr_b32 s4, s2, 3")
    a("  s_and_b32 s5, s2, 7")
    a("  s_lshr_b32 s6, s5, 2")
    a("  s_and_b32 s7, s5, 3")
    a("  s_mov_b32 s11, s2")
    a("  v_mov_b32 v1, 0")
    a("  v_mov_b32 v2, 1")
    if cfg.stamps:
        a("  v_mov_b32 v15, 0")
    a("  s_cmp_eq_u32 s3, 3")
    a("  s_cbranch_scc0 L_noinit")
    if cfg.cpf:
        a("  s_getpc_b64 s[50:51]")
        a("L_pc0:")
        a(f"  s_sub_u32 s50, s50, L_pc0-{NAME}_kernel")
        a("  s_subb_u32 s51, s51, 0")
        a("  v_lshlrev_b32 v3, 7, v0")
        a(f"  v_min_u32 v4, L_end-{NAME}_kernel, v3")
        a("  global_load_dword v16, v4, s[50:51]")
        a("  v_add_u32 v3, 8192, v3")
        a(f"  v_min_u32 v4, L_end-{NAME}_kernel, v3")
        a("  global_load_dword v17, v4, s[50:51]")
    a("  v_lshlrev_b32 v3, 2, v0")
    a("  ds_write_b32 v3, v1")
    a("  s_waitcnt lgkmcnt(0)")
    a("L_noinit:")
    a("  s_barrier")
    a("  s_cmp_lt_u32 s3, 4")
    a("  s_cbranch_scc1 L_aux")
    a("  s_and_b32 s10, s3, 3")
    a("  s_lshl_b32 s12, s6, 26")
    a("  s_lshl_b32 s13, s4, 21")
    a("  s_add_u32 s12, s12, s13")
    a("  s_lshl_b32 s13, s7, 17")
    a("  s_add_u32 s12, s12, s13")
    a("  s_lshl_b32 s13, s10, 15")
    a("  s_add_u32 s12, s12, s13")
    a(f"  s_add_u32 s12, s12, {6144*256}")
    a("  v_lshlrev_b32 v3, 4, v0")
    a("  s_lshl_b32 s13, s10, 2")
    a("  v_mov_b32 v4, s13")
    a("  s_cmp_ge_u32 s3, 8")
    a("  s_cbranch_scc1 L_vpre")
    if cfg.prio:
        a("  s_setprio 1")
    a("  s_waitcnt lgkmcnt(0)")
    srd(40, 18, 0x8000000)
    a(f"  v_add_u32 v5, {F_KI}, v4")
    a("  s_branch L_issue")
    a("L_vpre:")
    a(f"  v_add_u32 v5, {F_VI}, v4")
    wait_lds(F_KI, 1, 8, n=4, sleep=4)
    srd(40, 20, 0x8000000)
    a("L_issue:")
    stamp(0)
    for t in range(32):
        if cfg.win and t >= cfg.win:
            a(f"  s_waitcnt vmcnt({cfg.win-1})")
        a(f"  buffer_load_dwordx4 v[{16+4*t}:{19+4*t}], v3, s[40:43], s12 offen offset:{(t&3)*1024} {cfg.nt_kv}")
        if (t & 3) == 3 and t < 31:
            a("  s_add_u32 s12, s12, 4096")
    a("  ds_write_b32 v5, v2")
    stamp(1)
    a("  s_cmp_ge_u32 s3, 8")
    a("  s_cbranch_scc1 L_vwave")
    a("  s_branch L_kwave")

    a("L_aux:")
    if cfg.prio:
        a("  s_setprio 3")
    a("  s_cmp_eq_u32 s3, 2")
    a("  s_cbranch_scc1 L_aux2")
    a("  s_cmp_eq_u32 s3, 3")
    a("  s_cbranch_scc1 L_aux3")
    a("  v_lshrrev_b32 v3, 5, v0")
    a("  v_and_b32 v4, 31, v0")
    a("  v_mul_u32_u24 v5, 1280, v3")
    a("  v_lshl_add_u32 v6, v4, 3, v5")
    a("  v_min_u32 v7, 19, v4")
    a("  v_lshl_add_u32 v7, v7, 3, v5")
    a("  s_mul_i32 s8, s5, 160")
    a("  v_add_u32 v7, s8, v7")
    a("  v_lshrrev_b32 v8, 4, v0")
    a("  v_and_b32 v9, 15, v0")
    a("  s_waitcnt lgkmcnt(0)")
    stamp(0)
    for i in range(5):
        a(f"  global_load_dwordx2 v[{20+2*i}:{21+2*i}], v6, s[16:17] offset:{256*i}")
    a("  global_load_dwordx2 v[30:31], v7, s[16:17]")
    a("  s_cmp_eq_u32 s3, 1")
    a("  s_cbranch_scc1 L_iss1")
    srd(40, 22, 640 * 8192)
    a("  v_lshlrev_b32 v10, 13, v8")
    a("  v_lshl_add_u32 v10, v9, 4, v10")
    a("  s_mul_i32 s12, s5, 80*8192")
    a("  s_lshl_b32 s13, s4, 8")
    a("  s_add_u32 s12, s12, s13")
    for t in range(20):
        a(f"  buffer_load_dwordx4 v[{40+4*t}:{43+4*t}], v10, s[40:43], s12 offen {cfg.nt_w}")
        if t < 19:
            a("  s_add_u32 s12, s12, 32768")
    a("  s_branch L_ln")
    a("L_iss1:")
    srd(40, 28, 640 * 3456)
    a("  s_cmp_ge_u32 s4, 27")
    a("  s_cbranch_scc1 L_end")
    a("  v_mul_u32_u24 v10, 3456, v8")
    a("  v_lshl_add_u32 v10, v9, 3, v10")
    a("  s_mul_i32 s12, s5, 80*3456")
    a("  s_lshl_b32 s13, s4, 7")
    a("  s_add_u32 s12, s12, s13")
    for t in range(5):
        for u in range(4):
            pass
    for t in range(20):
        a(f"  buffer_load_dwordx2 v[{40+2*t}:{41+2*t}], v10, s[40:43], s12 offen {cfg.nt_w}")
        if t < 19:
            a("  s_add_u32 s12, s12, 13824")
    a("L_ln:")
    X = 120
    a("  s_mul_i32 s13, s3, 768")
    a("  v_mul_u32_u24 v143, 320, v3")
    a("  v_lshl_add_u32 v143, v4, 2, v143")
    a("  v_add_u32 v143, s13, v143")
    a("  s_waitcnt vmcnt(21)")
    for i in range(10):
        a(f"  v_lshlrev_b32 v{X+2*i}, 16, v{20+i}")
        a(f"  v_and_b32 v{X+2*i+1}, 0xffff0000, v{20+i}")
    for i in range(10):
        a(f"  v_add_f32 v{144+i}, v{X+2*i}, v{X+2*i+1}")
    for i in range(5):
        a(f"  v_add_f32 v{144+i}, v{144+i}, v{149+i}")
    a("  v_add_f32 v144, v144, v145")
    a("  v_add_f32 v146, v146, v147")
    a("  v_add_f32 v144, v144, v148")
    a("  v_add_f32 v140, v144, v146")

    def half_allreduce(v, t):
        wave_allreduce_row(v)
        a(f"  v_mov_b32 v{t}, v{v}")
        a(f"  v_permlane16_swap_b32 v{v}, v{t}")
        a(f"  v_add_f32 v{v}, v{v}, v{t}")

    def div640(v, t, e):
        a(f"  v_mul_f32 v{t}, 0x3acccccd, v{v}")
        a(f"  v_fma_f32 v{e}, v{t}, s12, v{v}")
        a(f"  v_fmac_f32 v{t}, 0x3acccccd, v{e}")
        a(f"  v_mov_b32 v{v}, v{t}")

    a("  s_mov_b32 s12, 0xc4200000")
    half_allreduce(140, 141)
    div640(140, 141, 142)
    for i in range(20):
        a(f"  v_sub_f32 v{X+i}, v{X+i}, v140")
    a(f"  v_mul_f32 v141, v{X}, v{X}")
    a(f"  v_mul_f32 v142, v{X+1}, v{X+1}")
    for i in range(2, 20, 2):
        a(f"  v_fmac_f32 v141, v{X+i}, v{X+i}")
        a(f"  v_fmac_f32 v142, v{X+i+1}, v{X+i+1}")
    a("  v_add_f32 v141, v141, v142")
    half_allreduce(141, 142)
    div640(141, 142, 144)
    rne(140, 140)
    rne(141, 141)
    a("  v_add_f32 v141, 0x3727c5ac, v141")
    rne(141, 141)
    a("  v_sqrt_f32 v141, v141")
    rne(141, 141)
    a("  v_rcp_f32 v142, v141")
    a("  s_waitcnt vmcnt(20)")
    a("  v_lshlrev_b32 v144, 16, v30")
    a("  v_and_b32 v145, 0xffff0000, v30")
    a("  v_lshlrev_b32 v146, 16, v31")
    a("  v_and_b32 v147, 0xffff0000, v31")
    for i in range(4):
        a(f"  v_sub_f32 v{144+i}, v{144+i}, v140")
    for i in range(4):
        rne(144 + i, 144 + i)
    for i in range(4):
        a(f"  v_mul_f32 v{148+i}, v{144+i}, v142")
    for i in range(4):
        a(f"  v_fma_f32 v{152+i}, -v{148+i}, v141, v{144+i}")
    for i in range(4):
        a(f"  v_fmac_f32 v{148+i}, v{152+i}, v142")
    for i in range(4):
        a(f"  v_cvt_pk_bf16_f32 v{148+i}, v{148+i}, v{148+i}")
    a("  s_mov_b32 exec_lo, 0xfffff")
    a("  s_mov_b32 exec_hi, 0xfffff")
    for g in range(4):
        a(f"  ds_write_b32 v143, v{148+g} offset:{L_XN+80*g}")
    a("  s_mov_b64 exec, -1")
    stub()

    def const_masks(nm, base, vt):
        a(f"  v_and_b32 v{vt}, 1, v0")
        a(f"  v_lshlrev_b32 v{vt}, 4, v{vt}")
        a(f"  v_mov_b32 v{vt+1}, 0xffff")
        a(f"  v_lshlrev_b32 v{vt}, v{vt}, v{vt+1}")
        a(f"  v_bfe_u32 v{vt+1}, v0, 1, {2 if nm == 4 else 1}")
        for j in range(nm):
            a(f"  v_cmp_eq_u32 vcc, {j}, v{vt+1}")
            a(f"  v_cndmask_b32 v{base+j}, 0, v{vt}, vcc")

    a("  s_cmp_eq_u32 s3, 1")
    a("  s_cbranch_scc1 L_aux1")
    a("L_aux0:")
    const_masks(4, 156, 160)
    a("  v_bfe_u32 v11, v0, 3, 1")
    a("  v_lshl_add_u32 v11, v11, 2, v8")
    a("  v_mul_u32_u24 v11, 80, v11")
    a("  s_waitcnt lgkmcnt(0)")
    for i in range(5):
        a(f"  ds_read_b128 v[{120+4*i}:{123+4*i}], v11 offset:{L_XN+16*i}")
    a("  v_lshrrev_b32 v12, 1, v8")
    a("  v_lshlrev_b32 v12, 9, v12")
    a("  v_lshl_add_u32 v12, v9, 5, v12")
    a("  v_and_b32 v13, 1, v8")
    a("  v_lshl_add_u32 v12, v13, 4, v12")
    a("  s_lshl_b32 s12, s11, 10")
    if E1Q:
        a(f"  s_add_u32 s12, s12, {E1Q}")
    a("  v_add_u32 v12, s12, v12")
    a("  v_mov_b32 v14, 0xff")
    a("  s_waitcnt lgkmcnt(0)")
    stamp(1)
    for t in range(20):
        A = 140 + 4 * (t & 1)
        for j in range(4):
            a(f"  v_and_b32 v{A+j}, v{120+t}, v{156+j}")
        a(f"  s_waitcnt vmcnt({19-t})")
        c = "0" if t == 0 else "v[148:151]"
        a(f"  v_mfma_f32_16x16x32_bf16 v[148:151], v[{A}:{A+3}], v[{40+4*t}:{43+4*t}], {c}")
    get_tag(16)
    tag4(148, 14)
    a("  global_store_dwordx4 v12, v[148:151], s[36:37] sc1")
    lane_tags(36, 16)
    stamp(2)
    a("  s_lshl_b32 s12, s4, 13")
    a("  s_lshl_b32 s13, s6, 9")
    a("  s_add_u32 s12, s12, s13")
    a(f"  s_add_u32 s12, s12, {E1Q+4096}")
    a("  v_lshlrev_b32 v12, 3, v0")
    a("  v_add_u32 v12, s12, v12")
    stamp(3)

    def iss():
        for p in range(8):
            a(f"  global_load_dwordx2 v[{20+2*p}:{21+2*p}], v12, s[36:37] offset:{p*1024-4096} sc1")
    poll_loop(iss, lambda: chk_tags([(20 + k, f"v{36 + (k & 1)}") for k in range(16)], 40), sleep=cfg.psleep)
    for p in range(1, 8):
        a(f"  v_add_f32 v20, v20, v{20+2*p}")
        a(f"  v_add_f32 v21, v21, v{21+2*p}")
    a("  v_cvt_pk_bf16_f32 v20, v20, v21")
    a("  v_lshlrev_b32 v12, 2, v0")
    a(f"  ds_write_b32 v12, v20 offset:{L_Q}")
    set_lds_flag(F_Q)
    stamp(4)
    stub()
    a("  s_lshl_b32 s12, s4, 1")
    a("  s_add_u32 s12, s12, s6")
    a("  s_lshl_b32 s12, s12, 7")
    a(f"  s_add_u32 s12, s12, {E2T}")
    a("  v_lshl_add_u32 v12, v9, 3, s12")
    wait_lds(F_KI, 1, 16, n=4, sleep=8)

    def iss2():
        a("  global_load_dwordx2 v[20:21], v12, s[36:37] sc1")

    def chk2():
        a("  v_xor_b32 v22, s88, v20")
        a("  v_and_b32 v22, 0xffff, v22")
        a("  v_xor_b32 v23, s82, v21")
        a("  v_and_b32 v23, 0xff, v23")
        a("  v_or_b32 v22, v22, v23")
        a("  v_cmp_ne_u32 vcc, 0, v22")
    poll_loop(iss2, chk2, sleep=cfg.psleep)
    stamp(5)
    a("  v_and_b32 v20, 0xffff0000, v20")
    a("  v_mov_b32 v22, v20")
    wave_allreduce_row(22, "v_max_f32")
    a("  v_sub_f32 v23, v20, v22")
    a("  v_mul_f32 v23, 0x3fb8aa3b, v23")
    a("  v_exp_f32 v23, v23")
    a("  v_mul_f32 v23, v23, v21")
    wave_allreduce_row(23)
    a("  v_rcp_f32 v24, v23")
    a("  v_fma_f32 v25, -v23, v24, 1.0")
    a("  v_fmac_f32 v24, v25, v24")
    a("  v_mov_b32 v23, v24")
    a(f"  ds_write_b64 v1, v[22:23] offset:{L_ML}")
    stamp(6)
    stamp_flush()
    a("  s_endpgm")
    stub(True)

    a("L_aux1:")
    const_masks(2, 156, 160)
    a("  v_bfe_u32 v11, v0, 2, 1")
    a("  v_lshl_add_u32 v11, v11, 2, v8")
    a("  v_mul_u32_u24 v11, 80, v11")
    a("  s_waitcnt lgkmcnt(0)")
    for i in range(5):
        a(f"  ds_read_b128 v[{120+4*i}:{123+4*i}], v11 offset:{L_XN+768+16*i}")
    a("  v_lshlrev_b32 v12, 8, v8")
    a("  v_lshl_add_u32 v12, v9, 4, v12")
    a("  s_lshl_b32 s12, s11, 9")
    a(f"  s_add_u32 s12, s12, {E1H}")
    a("  v_add_u32 v12, s12, v12")
    a("  v_mov_b32 v14, 0xff")
    a("  s_waitcnt lgkmcnt(0)")
    for t in range(20):
        A = 140 + 2 * (t & 1)
        for j in range(2):
            a(f"  v_and_b32 v{A+j}, v{120+t}, v{156+j}")
        a(f"  s_waitcnt vmcnt({19-t})")
        c = "0" if t == 0 else "v[148:151]"
        a(f"  v_mfma_f32_16x16x16_bf16 v[148:151], v[{A}:{A+1}], v[{40+2*t}:{41+2*t}], {c}")
    get_tag(16)
    tag4(148, 14)
    a("  s_mov_b64 exec, 0xffffffff")
    a("  global_store_dwordx4 v12, v[148:151], s[36:37] sc1")
    a("  s_mov_b64 exec, -1")
    lane_tags(36, 16)
    stamp(1)
    a("  s_cmp_lt_u32 s5, 5")
    a("  s_cbranch_scc1 L_aux1_done")
    a("  s_lshl_b32 s12, s4, 12")
    a(f"  s_add_u32 s12, s12, {E1H}")
    a("  v_lshlrev_b32 v12, 3, v0")
    a("  v_add_u32 v12, s12, v12")

    def iss3():
        for p in range(8):
            a(f"  global_load_dwordx2 v[{20+2*p}:{21+2*p}], v12, s[36:37] offset:{p*512} sc1")
    poll_loop(iss3, lambda: chk_tags([(20 + k, f"v{36 + (k & 1)}") for k in range(16)], 40), sleep=max(cfg.psleep, 4))
    for p in range(1, 8):
        a(f"  v_add_f32 v20, v20, v{20+2*p}")
        a(f"  v_add_f32 v21, v21, v{21+2*p}")
    a("  v_max_f32 v20, 0, v20")
    a("  v_max_f32 v21, 0, v21")
    a("  v_cvt_pk_bf16_f32 v20, v20, v21")
    a("  v_lshlrev_b32 v12, 2, v0")
    a(f"  ds_write_b32 v12, v20 offset:{L_HB}")
    set_lds_flag(F_H)
    a("L_aux1_done:")
    stamp(2)
    stamp_flush()
    a("  s_endpgm")
    stub(True)

    a("L_aux2:")
    a("  s_cmp_eq_u32 s11, 0")
    a("  s_cbranch_scc0 L_a2_poll")
    a("  s_memrealtime s[12:13]")
    a("  s_waitcnt lgkmcnt(0)")
    stamp(0)
    a("  s_mul_i32 s12, s12, 0x9e3779b1")
    a("  s_and_b32 s12, s12, 0x7f7f7f7f")
    a("  s_max_u32 s12, s12, 1")
    a("  v_mov_b32 v16, s12")
    a("  s_mov_b64 exec, 1")
    a("  global_store_dword v1, v16, s[34:35] sc1")
    a("  s_mov_b64 exec, -1")
    a(f"  ds_write_b32 v1, v16 offset:{F_TAG}")
    a("  s_branch L_a2_done")
    a("L_a2_poll:")
    a(f"  s_sleep {cfg.fsleep}")
    a("  s_waitcnt lgkmcnt(0)")
    stamp(0)
    L = lab("fl")
    D = lab("fld")
    a("  s_mov_b32 s9, 0")
    a(f"{L}:")
    a("  global_load_dword v16, v1, s[34:35] sc1")
    a("  s_waitcnt vmcnt(0)")
    a("  v_readfirstlane_b32 s12, v16")
    a("  s_cmp_lg_u32 s12, 0")
    a(f"  s_cbranch_scc1 {D}")
    a(f"  s_sleep {max(cfg.psleep, 4)}")
    a("  s_add_u32 s9, s9, 1")
    a(f"  s_cmp_lt_u32 s9, {cfg.spin_g}")
    a(f"  s_cbranch_scc1 {L}")
    a(f"{D}:")
    a(f"  ds_write_b32 v1, v16 offset:{F_TAG}")
    a("L_a2_done:")
    stamp(2)
    stamp_flush()
    a("  s_endpgm")
    stub(True)

    a("L_aux3:")
    if cfg.walk:
        if cfg.cpf:
            a("  s_waitcnt vmcnt(0)")
        a("  s_branch L_w0")
        a("L_wdone:")
    a("  s_waitcnt lgkmcnt(0)")
    stamp(0)
    a("  s_cmp_ge_u32 s11, 160")
    a("  s_cbranch_scc1 L_aux3_done")
    a("  s_cmp_ge_u32 s11, 80")
    a("  s_cselect_b32 s13, 1, 0")
    a("  s_mul_i32 s14, s13, 80")
    a("  s_sub_u32 s14, s11, s14")
    a("  v_and_b32 v3, 1, v0")
    a("  v_lshrrev_b32 v4, 4, v0")
    a("  v_lshl_add_u32 v5, v3, 2, v4")
    a("  s_mul_i32 s15, s13, 640")
    a("  s_lshl_b32 s8, s14, 3")
    a("  s_add_u32 s15, s15, s8")
    a("  v_add_u32 v5, s15, v5")
    a("  v_lshlrev_b32 v5, 1, v5")
    a("  global_load_ushort v6, v5, s[16:17]")
    a("  v_lshrrev_b32 v7, 1, v0")
    a("  v_mul_u32_u24 v8, 2560, v7")
    a("  v_lshl_add_u32 v8, v3, 4, v8")
    a(f"  s_mul_i32 s15, s13, {E3B}")
    a("  s_lshl_b32 s8, s14, 5")
    a("  s_add_u32 s15, s15, s8")
    a(f"  s_add_u32 s15, s15, {E3}")
    a("  v_add_u32 v8, s15, v8")
    for i in range(1, 6):
        a(f"  v_add_u32 v{8+i}, {81920*i}, v8")
    a("  v_cmp_gt_u32 s[48:49], 22, v7")
    a("  v_cndmask_b32 v13, v12, v13, s[48:49]")
    get_tag(16)
    L = lab("wo")
    D = lab("wod")
    a("  s_mov_b32 s9, 0")
    a(f"{L}:")
    a(f"  ds_read_b32 v16, v1 offset:{CNT_O}")
    a("  s_waitcnt lgkmcnt(0)")
    a("  v_readfirstlane_b32 s8, v16")
    a("  s_cmp_ge_u32 s8, 4")
    a(f"  s_cbranch_scc1 {D}")
    a("  s_sleep 4")
    a("  s_add_u32 s9, s9, 1")
    a(f"  s_cmp_lt_u32 s9, {SPIN_L}")
    a(f"  s_cbranch_scc1 {L}")
    a(f"{D}:")
    stamp(1)

    def iss6():
        for i in range(6):
            a(f"  global_load_dwordx4 v[{16+4*i}:{19+4*i}], v{8+i}, s[36:37] sc1")
    poll_loop(iss6, lambda: chk_tags([(16 + k, f"s{80 + (k & 3)}") for k in range(24)], 44), sleep=0)
    stamp(2)
    for r in range(4):
        a(f"  v_cndmask_b32 v{36+r}, 0, v{36+r}, s[48:49]")
    for r in range(4):
        a(f"  v_add_f32 v{16+r}, v{16+r}, v{20+r}")
        a(f"  v_add_f32 v{24+r}, v{24+r}, v{28+r}")
        a(f"  v_add_f32 v{32+r}, v{32+r}, v{36+r}")
    for r in range(4):
        a(f"  v_add_f32 v{16+r}, v{16+r}, v{24+r}")
    a("  v_permlane32_swap_b32 v16, v18")
    a("  v_permlane32_swap_b32 v17, v19")
    a("  v_permlane32_swap_b32 v32, v34")
    a("  v_permlane32_swap_b32 v33, v35")
    a("  v_add_f32 v16, v16, v18")
    a("  v_add_f32 v17, v17, v19")
    a("  v_add_f32 v32, v32, v34")
    a("  v_add_f32 v33, v33, v35")
    a("  v_permlane16_swap_b32 v16, v17")
    a("  v_permlane16_swap_b32 v32, v33")
    a("  v_add_f32 v16, v16, v17")
    a("  v_add_f32 v32, v32, v33")
    for r in (8, 4, 2):
        a(f"  v_add_f32_dpp v16, v16, v16 row_ror:{r} row_mask:0xf bank_mask:0xf")
        a(f"  v_add_f32_dpp v32, v32, v32 row_ror:{r} row_mask:0xf bank_mask:0xf")
    rne(16, 16)
    rne(32, 32)
    a("  v_mul_f32 v33, 0xbfb8aa3b, v32")
    a("  v_exp_f32 v33, v33")
    a("  v_add_f32 v33, 1.0, v33")
    a("  v_rcp_f32 v34, v33")
    a("  v_mul_f32 v35, v32, v34")
    a("  v_fma_f32 v36, -v35, v33, v32")
    a("  v_fmac_f32 v35, v36, v34")
    rne(35, 35)
    a("  v_mul_f32 v16, v16, v35")
    rne(16, 16)
    a("  v_lshlrev_b32 v6, 16, v6")
    a("  v_add_f32 v16, v6, v16")
    a("  v_cvt_pk_bf16_f32 v16, v16, v16")
    a("  s_mov_b32 exec_lo, 0x00030003")
    a("  s_mov_b32 exec_hi, 0x00030003")
    a("  global_store_short v5, v16, s[32:33] sc1")
    a("  s_mov_b64 exec, -1")
    a("L_aux3_done:")
    stamp(3)
    stamp_flush()
    a("  s_endpgm")
    stub(True)

    a("L_kwave:")
    a("  v_and_b32 v4, 15, v0")
    a("  v_lshlrev_b32 v5, 4, v4")
    a("  s_lshl_b32 s14, s11, 5")
    a("  s_lshl_b32 s15, s10, 3")
    a("  s_add_u32 s14, s14, s15")
    a(f"  s_add_u32 s14, s14, {E2T}")
    a("  v_mov_b32 v12, s14")
    a("  v_bfrev_b32 v11, v4")
    a("  v_lshrrev_b32 v11, 26, v11")
    a("  v_lshrrev_b32 v13, 4, v0")
    a("  v_lshl_add_u32 v11, v13, 7, v11")
    a("  s_lshl_b32 s14, s10, 9")
    a("  v_add_u32 v11, s14, v11")
    a("  v_and_b32 v6, 2, v0")
    a("  v_cmp_ne_u32 s[48:49], 0, v6")
    a("  v_and_b32 v6, 1, v0")
    a("  v_cmp_ne_u32 s[50:51], 0, v6")
    a("  v_mov_b32 v14, 0xff")
    get_tag(6)
    wait_lds(F_Q, 1, 6, sleep=1)
    a(f"  ds_read_b128 v[144:147], v5 offset:{L_Q}")
    a("  s_waitcnt lgkmcnt(0)")
    stamp(2)
    R = lambda t: 16 + 4 * t
    for G in range(8):
        t0 = 4 * G
        a(f"  s_waitcnt vmcnt({28-4*G})")
        for k in range(4):
            for t in range(t0, t0 + 4):
                c = "0" if k == 0 else f"v{R(t)}"
                a(f"  v_dot2_f32_bf16 v{R(t)}, v{R(t)+k}, v{144+k}, {c}")
        for t in (t0, t0 + 2):
            a(f"  v_add_f32_dpp v{R(t)}, v{R(t)}, v{R(t)} row_ror:8 row_mask:0xf bank_mask:0x3")
            a(f"  v_add_f32_dpp v{R(t)}, v{R(t+1)}, v{R(t+1)} row_ror:8 row_mask:0xf bank_mask:0xc")
        a(f"  v_add_f32_dpp v{R(t0)}, v{R(t0)}, v{R(t0)} row_half_mirror row_mask:0xf bank_mask:0x5")
        a(f"  v_add_f32_dpp v{R(t0)}, v{R(t0+2)}, v{R(t0+2)} row_half_mirror row_mask:0xf bank_mask:0xa")
        if G in (2, 6):
            stub()
    for i in range(4):
        x, y = R(8 * i), R(8 * i + 4)
        a(f"  v_cndmask_b32 v{x+1}, v{x}, v{y}, s[48:49]")
        a(f"  v_cndmask_b32 v{x+2}, v{y}, v{x}, s[48:49]")
    for i in range(4):
        x = R(8 * i)
        a(f"  v_add_f32_dpp v{x}, v{x+2}, v{x+1} quad_perm:[2,3,0,1] row_mask:0xf bank_mask:0xf")
    for i in range(2):
        x, y = R(16 * i), R(16 * i + 8)
        a(f"  v_cndmask_b32 v{x+1}, v{x}, v{y}, s[50:51]")
        a(f"  v_cndmask_b32 v{x+2}, v{y}, v{x}, s[50:51]")
    for i in range(2):
        x = R(16 * i)
        a(f"  v_add_f32_dpp v{x}, v{x+2}, v{x+1} quad_perm:[1,0,3,2] row_mask:0xf bank_mask:0xf")
    S0, S1 = R(0), R(16)
    a(f"  v_cvt_pk_bf16_f32 v6, v{S0}, v{S1}")
    a("  v_lshlrev_b32 v7, 16, v6")
    a("  v_and_b32 v8, 0xffff0000, v6")
    a("  v_mul_f32 v7, 0x3db504f3, v7")
    a("  v_mul_f32 v8, 0x3db504f3, v8")
    a("  v_cvt_pk_bf16_f32 v6, v7, v8")
    a("  v_lshlrev_b32 v148, 16, v6")
    a("  v_and_b32 v149, 0xffff0000, v6")
    a("  v_max_f32 v150, v148, v149")
    wave_allreduce_row(150, "v_max_f32")
    a("  v_mov_b32 v10, v150")
    a("  v_permlane16_swap_b32 v150, v10")
    a("  v_max_f32 v150, v150, v10")
    a("  v_mov_b32 v10, v150")
    a("  v_permlane32_swap_b32 v150, v10")
    a("  v_max_f32 v150, v150, v10")
    a("  v_sub_f32 v7, v148, v150")
    a("  v_sub_f32 v8, v149, v150")
    a("  v_mul_f32 v7, 0x3fb8aa3b, v7")
    a("  v_mul_f32 v8, 0x3fb8aa3b, v8")
    a("  v_exp_f32 v7, v7")
    a("  v_exp_f32 v8, v8")
    a("  v_add_f32 v151, v7, v8")
    wave_allreduce_row(151)
    a("  v_mov_b32 v10, v151")
    a("  v_permlane16_swap_b32 v151, v10")
    a("  v_add_f32 v151, v151, v10")
    a("  v_mov_b32 v10, v151")
    a("  v_permlane32_swap_b32 v151, v10")
    a("  v_add_f32 v151, v151, v10")
    a("  s_and_b32 s8, s88, 0xffff")
    a("  v_or_b32 v150, s8, v150")
    a("  v_add_u32 v151, s86, v151")
    a("  v_bfi_b32 v151, v14, s82, v151")
    a("  s_mov_b64 exec, 1")
    a("  global_store_dwordx2 v12, v[150:151], s[36:37] sc1")
    a("  s_mov_b64 exec, -1")
    stamp(3)
    stub()
    a("  s_lshl_b32 s14, s5, 2")
    a("  s_add_u32 s14, s14, s10")
    tile_params(14)
    a("  v_lshrrev_b32 v8, 4, v0")
    a("  v_and_b32 v9, 15, v0")
    a("  v_mul_u32_u24 v10, 8*1280, v8")
    a("  v_lshl_add_u32 v10, v9, 4, v10")
    e3_lane_off(12, 13)
    a(f"  s_add_u32 s70, s70, {E3}")
    a("  v_add_u32 v12, s70, v12")
    a("  s_cmp_eq_u32 s72, 1")
    a("  s_cselect_b32 s44, s24, s30")
    a("  s_cselect_b32 s45, s25, s31")
    a("  s_and_b32 s45, s45, 0xffff")
    a(f"  s_mov_b32 s47, {1728*1280}")
    a(f"  s_cselect_b32 s46, {4096*1280}, s47")
    a("  s_mov_b32 s47, 0x20000")
    a("  s_add_u32 s13, s71, 5120")

    def tile_loads():
        for i in range(8):
            so = "s71" if i < 4 else "s13"
            a(f"  buffer_load_dwordx4 v[{16+4*i}:{19+4*i}], v10, s[44:47], {so} offen offset:{(i&3)*1280} {cfg.nt_wo}")
    L = lab("ml")
    D = lab("mld")
    a("  s_mov_b32 s9, 0")
    a(f"{L}:")
    a(f"  ds_read_b64 v[150:151], v1 offset:{L_ML}")
    a("  s_waitcnt lgkmcnt(0)")
    a("  v_readfirstlane_b32 s8, v151")
    a("  s_cmp_lg_u32 s8, 0")
    a(f"  s_cbranch_scc1 {D}")
    a("  s_sleep 1")
    a("  s_add_u32 s9, s9, 1")
    a(f"  s_cmp_lt_u32 s9, {SPIN_L}")
    a(f"  s_cbranch_scc1 {L}")
    a(f"{D}:")
    stamp(4)
    a("  v_sub_f32 v7, v148, v150")
    a("  v_sub_f32 v6, v149, v150")
    a("  v_mul_f32 v7, 0x3fb8aa3b, v7")
    a("  v_mul_f32 v6, 0x3fb8aa3b, v6")
    a("  v_exp_f32 v7, v7")
    a("  v_exp_f32 v6, v6")
    a("  v_mul_f32 v7, v7, v151")
    a("  v_mul_f32 v6, v6, v151")
    a("  v_cvt_pk_bf16_f32 v7, v7, v7")
    a("  v_cvt_pk_bf16_f32 v6, v6, v6")
    a(f"  ds_write_b32 v11, v7 offset:{L_P}")
    a(f"  ds_write_b32 v11, v6 offset:{L_P+64}")
    a("  s_lshl_b32 s12, s10, 2")
    a("  v_mov_b32 v13, s12")
    a(f"  ds_write_b32 v13, v2 offset:{F_P}")
    stamp(5)
    a("  s_cmp_eq_u32 s72, 0")
    a("  s_cbranch_scc1 L_k_done")
    LG = lab("tg")
    g1 = cfg.gate_wo
    g2 = cfg.gate_w2
    if g1 != g2:
        a(f"  s_cmp_eq_u32 s72, {2 if g1 else 1}")
        a(f"  s_cbranch_scc1 {LG}")
    if g1 or g2:
        wait_lds(F_VI, 1, 144, n=4, sleep=2)
    a(f"{LG}:")
    tile_loads()
    a("  v_and_b32 v3, 3, v0")
    a("  v_lshlrev_b32 v3, 9, v3")
    a("  v_bfe_u32 v4, v0, 3, 1")
    a("  v_lshl_add_u32 v3, v4, 11, v3")
    a("  v_bfe_u32 v4, v0, 2, 1")
    a("  v_lshl_add_u32 v3, v4, 4, v3")
    a("  v_lshl_add_u32 v3, v8, 5, v3")
    a("  s_lshl_b32 s14, s4, 12")
    a("  s_lshl_b32 s15, s74, 7")
    a("  s_add_u32 s14, s14, s15")
    a(f"  s_add_u32 s14, s14, {E2O}")
    a("  v_add_u32 v3, s14, v3")
    a("  v_bfe_u32 v4, v0, 3, 1")
    a("  v_lshlrev_b32 v4, 7, v4")
    a("  v_lshl_add_u32 v4, v8, 4, v4")
    a("  s_lshl_b32 s14, s74, 6")
    a("  v_add_u32 v4, s14, v4")
    a("  v_bfe_u32 v5, v0, 4, 1")
    a("  v_cmp_eq_u32 s[48:49], 0, v5")
    a("  v_bfe_u32 v5, v0, 2, 1")
    a("  v_cmp_eq_u32 s[52:53], 0, v5")
    a("  s_mov_b32 s14, 0x05040100")
    a("  s_mov_b32 s15, 0x07060302")
    a("  s_waitcnt vmcnt(0)")
    stamp(6)
    for d in range(4):
        for q in range(4):
            ev = 16 + 4 * (2 * q) + d
            od = 16 + 4 * (2 * q + 1) + d
            a(f"  v_perm_b32 v{48+4*(2*d)+q}, v{od}, v{ev}, s14")
            a(f"  v_perm_b32 v{48+4*(2*d+1)+q}, v{od}, v{ev}, s15")
    stub()
    a("  s_cmp_eq_u32 s72, 1")
    a("  s_cbranch_scc1 L_t_wo")
    wait_lds(F_H, 1, 144, sleep=2)
    a(f"  ds_read_b128 v[112:115], v4 offset:{L_HB}")
    a("  s_waitcnt lgkmcnt(0)")
    a("  s_branch L_t_mm")
    a("L_t_wo:")

    def iss7():
        a("  global_load_dwordx4 v[80:83], v3, s[36:37] sc1")
    poll_loop(iss7, lambda: chk_tags([(80 + k, f"s{80 + k}") for k in range(4)], 84), sleep=0)
    stamp(7)
    for r in range(4):
        a(f"  v_add_f32_dpp v{80+r}, v{80+r}, v{80+r} quad_perm:[1,0,3,2] row_mask:0xf bank_mask:0xf")
    for r in range(4):
        a(f"  v_add_f32_dpp v{80+r}, v{80+r}, v{80+r} quad_perm:[2,3,0,1] row_mask:0xf bank_mask:0xf")
    a("  v_cvt_pk_bf16_f32 v112, v80, v81")
    a("  v_cvt_pk_bf16_f32 v113, v82, v83")
    a("  v_mov_b32 v114, v112")
    a("  v_mov_b32 v115, v113")
    a("  v_mov_b32_dpp v84, v112 row_half_mirror row_mask:0xf bank_mask:0xf")
    a("  v_mov_b32_dpp v85, v113 row_half_mirror row_mask:0xf bank_mask:0xf")
    a("  v_cndmask_b32 v112, v84, v112, s[52:53]")
    a("  v_cndmask_b32 v113, v85, v113, s[52:53]")
    a("  v_cndmask_b32 v114, v114, v84, s[52:53]")
    a("  v_cndmask_b32 v115, v115, v85, s[52:53]")
    a("L_t_mm:")
    for x in range(8):
        a(f"  v_mfma_f32_16x16x32_bf16 v[{116+4*x}:{119+4*x}], v[112:115], v[{48+4*x}:{51+4*x}], 0")
    for r in range(4):
        a(f"  v_cndmask_b32 v{80+r}, v{116+4*(4+r)}, v{116+4*r}, s[48:49]")
    tag4(80, 14)
    a("  global_store_dwordx4 v12, v[80:83], s[36:37] sc1")
    a("L_k_done:")
    stamp(8)
    stamp_flush()
    a("  s_endpgm")
    stub(True)

    a("L_vwave:")
    const_masks(4, 160, 6)
    a("  v_lshrrev_b32 v6, 4, v0")
    a("  v_lshlrev_b32 v6, 7, v6")
    a("  s_lshl_b32 s12, s10, 9")
    a("  v_add_u32 v6, s12, v6")
    a("  v_and_b32 v7, 15, v0")
    a("  v_lshlrev_b32 v7, 5, v7")
    a("  v_bfe_u32 v8, v0, 4, 1")
    a("  v_lshl_add_u32 v7, v8, 4, v7")
    a("  v_add_u32 v7, s12, v7")
    a("  s_lshl_b32 s12, s11, 9")
    a(f"  s_add_u32 s12, s12, {E2O}")
    a("  v_lshl_add_u32 v9, v0, 4, s12")
    a("  v_lshlrev_b32 v10, 4, v0")
    a("  v_mov_b32 v11, 0xff")
    get_tag(8)
    wait_lds(F_P, 4, 8, sleep=1)
    a(f"  ds_read_b128 v[144:147], v6 offset:{L_P}")
    stamp(2)
    for q in range(8):
        pb = 144 + 4 * (q & 1)
        if q < 7:
            nb = 144 + 4 * ((q + 1) & 1)
            a(f"  ds_read_b128 v[{nb}:{nb+3}], v6 offset:{L_P+16*(q+1)}")
            a("  s_waitcnt lgkmcnt(1)")
        else:
            a("  s_waitcnt lgkmcnt(0)")
        for u in range(4):
            t = 4 * q + u
            A = 152 + 4 * (t & 1)
            for j in range(4):
                a(f"  v_and_b32 v{A+j}, v{pb+u}, v{160+j}")
            a(f"  s_waitcnt vmcnt({31-t})")
            c = "0" if t == 0 else "v[164:167]"
            a(f"  v_mfma_f32_16x16x32_bf16 v[164:167], v[{A}:{A+3}], v[{16+4*t}:{19+4*t}], {c}")
        if q == 3:
            stub()
    stamp(3)
    a("  s_mov_b64 exec, 0xffffffff")
    a(f"  ds_write_b128 v7, v[164:167] offset:{L_O}")
    a("  s_mov_b64 exec, 1")
    a(f"  ds_add_rtn_u32 v8, v1, v2 offset:{CNT_O}")
    a("  s_mov_b64 exec, -1")
    a("  s_waitcnt lgkmcnt(0)")
    a("  v_readfirstlane_b32 s8, v8")
    a("  s_cmp_eq_u32 s8, 3")
    a("  s_cbranch_scc0 L_v_done")
    a("  s_mov_b64 exec, 0xffffffff")
    for w in range(4):
        a(f"  ds_read_b128 v[{16+4*w}:{19+4*w}], v10 offset:{L_O+512*w}")
    a("  s_waitcnt lgkmcnt(0)")
    for r in range(4):
        a(f"  v_add_f32 v{16+r}, v{16+r}, v{20+r}")
        a(f"  v_add_f32 v{24+r}, v{24+r}, v{28+r}")
    for r in range(4):
        a(f"  v_add_f32 v{16+r}, v{16+r}, v{24+r}")
    tag4(16, 11)
    a("  global_store_dwordx4 v9, v[16:19], s[36:37] sc1")
    a("  s_mov_b64 exec, -1")
    a("L_v_done:")
    stamp(4)
    stamp_flush()
    a("  s_endpgm")
    if cfg.walk:
        a(f"L_w{nstub[0]}:")
        a("  s_branch L_wdone")
    a("L_end:")
    a("  s_endpgm")
    a('.section .rodata,"a"')
    a(".p2align 6")
    a(f".amdhsa_kernel {NAME}_kernel")
    a("  .amdhsa_next_free_vgpr 168")
    a("  .amdhsa_next_free_sgpr 96")
    a("  .amdhsa_accum_offset 168")
    a("  .amdhsa_group_segment_fixed_size 0")
    a("  .amdhsa_kernarg_size 88")
    a("  .amdhsa_user_sgpr_count 2")
    a("  .amdhsa_user_sgpr_kernarg_segment_ptr 1")
    a("  .amdhsa_system_sgpr_workgroup_id_x 1")
    a(".end_amdhsa_kernel")
    return a.resolve() + "\n"


if __name__ == "__main__":
    out = sys.argv[1] if len(sys.argv) > 1 else f"cdna_kernels/{NAME}.s"

    class C(Cfg):
        pass
    for kv in sys.argv[2:]:
        k, v = kv.split("=")
        cur = getattr(C, k)
        if isinstance(cur, bool):
            v = v in ("1", "True", "true")
        elif isinstance(cur, int):
            v = int(v)
        setattr(C, k, v)
    open(out, "w").write(gen(C))
```

```python
import sys, os
sys.path.insert(0, "work")
from asmlib import Asm

NAME = "recurrent_scan__sliding_block_cached__dense_activation_relu__decode"

E1Q = 0x0
E1H = 0x40000
E2T = 0x60000
E2O = 0x64000
E3 = 0x90000
E3B = 182 * 2560
TS = 0x400000

F_Q, F_TAG, F_H, CNT_O = 0, 4, 12, 16
F_P, F_KI, F_VI = 32, 48, 64
L_ML = 96
L_Q, L_HB, L_XN, L_P, L_O = 256, 512, 1024, 2560, 4608
LDS_BYTES = 8192

SPIN_L = 1 << 21


class Cfg:
    nt_kv = "nt"
    nt_w = "nt"
    nt_wo = "nt"
    stamps = False
    dbg = False
    prio = True
    win = 8
    spin_g = 1 << 17
    cpf = True
    walk = True
    gate_wo = True
    gate_w2 = True
    psleep = 2
    fsleep = 20


def gen(cfg=Cfg):
    a = Asm()
    uid = [0]
    nstub = [0]

    def lab(p):
        uid[0] += 1
        return f"L_{p}_{uid[0]}"

    def stub(natural=False):
        if not cfg.walk:
            return
        k = nstub[0]
        nstub[0] += 1
        if not natural:
            a(f"  s_branch L_wsk{k}")
        a(f"L_w{k}:")
        a(f"  s_branch L_w{k+1}")
        if not natural:
            a(f"L_wsk{k}:")

    def stamp(i):
        if not cfg.stamps:
            return
        a("  s_memrealtime s[62:63]")
        a("  s_waitcnt lgkmcnt(0)")
        a(f"  v_writelane_b32 v15, s62, {i}")

    def dbg(k, wave=None, clk=False):
        if not cfg.dbg:
            return
        D = lab("dbg")
        a("  s_cmp_eq_u32 s11, 0")
        a(f"  s_cbranch_scc0 {D}")
        if wave is not None:
            a(f"  s_cmp_eq_u32 s3, {wave}")
            a(f"  s_cbranch_scc0 {D}")
        a("  s_memtime s[62:63]" if clk else "  s_memrealtime s[62:63]")
        a("  s_waitcnt lgkmcnt(0)")
        a("  v_mov_b32 v15, s62")
        a("  s_mov_b64 exec, 1")
        a(f"  global_store_dword v1, v15, s[34:35] offset:{4*k}")
        a("  s_mov_b64 exec, -1")
        a(f"{D}:")

    def stamp_flush():
        if not cfg.stamps:
            return
        a("  s_mul_i32 s62, s2, 12")
        a("  s_add_u32 s62, s62, s3")
        a("  s_lshl_b32 s62, s62, 6")
        a(f"  s_add_u32 s62, s62, {TS}")
        a("  v_lshlrev_b32 v14, 2, v0")
        a("  v_add_u32 v14, s62, v14")
        a("  s_mov_b64 exec, 0xffff")
        a("  global_store_dword v14, v15, s[36:37]")
        a("  s_mov_b64 exec, -1")

    def srd(base, lo, size):
        a(f"  s_mov_b32 s{base}, s{lo}")
        a(f"  s_and_b32 s{base+1}, s{lo+1}, 0xffff")
        a(f"  s_mov_b32 s{base+2}, {size}")
        a(f"  s_mov_b32 s{base+3}, 0x20000")

    def wait_lds(off, vz, vt, n=1, sleep=2):
        L = lab("wl")
        D = lab("wld")
        a("  s_mov_b32 s9, 0")
        a(f"{L}:")
        if n == 1:
            a(f"  ds_read_b32 v{vt}, v{vz} offset:{off}")
            a("  s_waitcnt lgkmcnt(0)")
        else:
            a(f"  ds_read_b128 v[{vt}:{vt+3}], v{vz} offset:{off}")
            a("  s_waitcnt lgkmcnt(0)")
            a(f"  v_and_b32 v{vt}, v{vt}, v{vt+1}")
            a(f"  v_and_b32 v{vt+2}, v{vt+2}, v{vt+3}")
            a(f"  v_and_b32 v{vt}, v{vt}, v{vt+2}")
        a(f"  v_readfirstlane_b32 s8, v{vt}")
        a("  s_cmp_lg_u32 s8, 0")
        a(f"  s_cbranch_scc1 {D}")
        if sleep:
            a(f"  s_sleep {sleep}")
        a("  s_add_u32 s9, s9, 1")
        a(f"  s_cmp_lt_u32 s9, {SPIN_L}")
        a(f"  s_cbranch_scc1 {L}")
        a(f"{D}:")

    def set_lds_flag(off, vz=1, vone=2):
        a(f"  ds_write_b32 v{vz}, v{vone} offset:{off}")

    def wave_allreduce_row(v, op="v_add_f32"):
        for r in (8, 4, 2, 1):
            a(f"  {op}_dpp v{v}, v{v}, v{v} row_ror:{r} row_mask:0xf bank_mask:0xf")

    def rne(dst, src):
        a(f"  v_cvt_pk_bf16_f32 v{dst}, v{src}, v{src}")
        a(f"  v_lshlrev_b32 v{dst}, 16, v{dst}")

    def get_tag(vt):
        wait_lds(F_TAG, 1, vt, sleep=1)
        a("  s_mov_b32 s88, s8")
        for i in range(4):
            a(f"  s_bfe_u32 s{80+i}, s8, {(8 << 16) | (8 * i)}")
            a(f"  s_sub_u32 s{84+i}, 0x80, s{80+i}")

    def tag4(base, vff):
        for r in range(4):
            a(f"  v_add_u32 v{base+r}, s{84+r}, v{base+r}")
        for r in range(4):
            a(f"  v_bfi_b32 v{base+r}, v{vff}, s{80+r}, v{base+r}")

    def chk_tags(pairs, t):
        first = True
        k = 0
        while k < len(pairs):
            if first:
                a(f"  v_xor_b32 v{t}, {pairs[k][1]}, v{pairs[k][0]}")
                k += 1
                first = False
            elif len(pairs) - k >= 2:
                a(f"  v_xor_b32 v{t+1}, {pairs[k][1]}, v{pairs[k][0]}")
                a(f"  v_xor_b32 v{t+2}, {pairs[k+1][1]}, v{pairs[k+1][0]}")
                a(f"  v_or3_b32 v{t}, v{t}, v{t+1}, v{t+2}")
                k += 2
            else:
                a(f"  v_xor_b32 v{t+1}, {pairs[k][1]}, v{pairs[k][0]}")
                a(f"  v_or_b32 v{t}, v{t}, v{t+1}")
                k += 1
        a(f"  v_and_b32 v{t}, 0xff, v{t}")
        a(f"  v_cmp_ne_u32 vcc, 0, v{t}")

    def lane_tags(vd, vt):
        a(f"  v_and_b32 v{vt}, 1, v0")
        a(f"  v_lshlrev_b32 v{vt}, 4, v{vt}")
        a(f"  v_lshrrev_b32_e64 v{vd}, v{vt}, s88")
        a(f"  v_lshrrev_b32 v{vd+1}, 8, v{vd}")

    def poll_loop(issue, check, sleep=0):
        L = lab("pl")
        D = lab("pld")
        a("  s_mov_b32 s9, 0")
        a(f"{L}:")
        issue()
        a("  s_waitcnt vmcnt(0)")
        check()
        a(f"  s_cbranch_vccz {D}")
        if sleep:
            a(f"  s_sleep {sleep}")
        a("  s_add_u32 s9, s9, 1")
        a(f"  s_cmp_lt_u32 s9, {cfg.spin_g}")
        a(f"  s_cbranch_scc1 {L}")
        a(f"{D}:")

    def max_tree(regs, t):
        regs = list(regs)
        k = 0
        while len(regs) > 1:
            new = []
            i = 0
            while i < len(regs):
                if len(regs) - i >= 3:
                    a(f"  v_max3_u32 v{t+k}, v{regs[i]}, v{regs[i+1]}, v{regs[i+2]}")
                    new.append(t + k); k += 1; i += 3
                elif len(regs) - i == 2:
                    a(f"  v_max_u32 v{t+k}, v{regs[i]}, v{regs[i+1]}")
                    new.append(t + k); k += 1; i += 2
                else:
                    new.append(regs[i]); i += 1
            regs = new
        a(f"  v_cmp_eq_u32 vcc, -1, v{regs[0]}")

    def tile_params(si):
        a(f"  s_sub_u32 s75, s{si}, 20")
        a(f"  s_cmp_lt_u32 s{si}, 20")
        a(f"  s_cselect_b32 s75, s{si}, s75")
        a("  s_cselect_b32 s76, 2, 1")
        a("  s_cselect_b32 s72, 1, 2")
        a("  s_cselect_b32 s70, 0, 128")
        a("  s_lshr_b32 s73, s75, s76")
        a("  s_lshl_b32 s74, s73, s76")
        a("  s_sub_u32 s74, s75, s74")
        a("  s_lshl_b32 s75, s4, s76")
        a("  s_add_u32 s75, s75, s74")
        a("  s_add_u32 s70, s70, s75")
        a("  s_mul_i32 s70, s70, 2560")
        a("  s_mul_i32 s71, s75, 32*1280")
        a("  s_lshl_b32 s75, s73, 9")
        a("  s_add_u32 s70, s70, s75")
        a("  s_lshl_b32 s75, s73, 8")
        a("  s_add_u32 s71, s71, s75")
        a("  s_cmp_ge_u32 s73, 5")
        a("  s_cselect_b32 s75, 0, 2")
        a("  s_cmp_ge_u32 s4, 27")
        a("  s_cselect_b32 s75, 0, s75")
        a("  s_cmp_eq_u32 s72, 2")
        a("  s_cselect_b32 s72, s75, s72")

    def e3_lane_off(vd, vt):
        a(f"  v_lshrrev_b32 v{vd}, 5, v0")
        a(f"  v_mul_u32_u24 v{vd}, {E3B}, v{vd}")
        a(f"  v_and_b32 v{vt}, 15, v0")
        a(f"  v_lshl_add_u32 v{vd}, v{vt}, 5, v{vd}")
        a(f"  v_bfe_u32 v{vt}, v0, 4, 1")
        a(f"  v_lshl_add_u32 v{vd}, v{vt}, 4, v{vd}")

    a(f"; @launch grid=(256,1,1) block=(768,1,1) lds={LDS_BYTES}")
    a('.amdgcn_target "amdgcn-amd-amdhsa--gfx950"')
    a(".text")
    a(f".globl {NAME}_kernel")
    a(".p2align 8")
    a(f".type {NAME}_kernel,@function")
    a(f"{NAME}_kernel:")
    a("  s_cmp_ge_u32 s2, 256")
    a("  s_cbranch_scc1 L_end")
    a("  s_load_dwordx16 s[16:31], s[0:1], 0")
    a("  s_load_dwordx4 s[32:35], s[0:1], 64")
    a("  s_load_dwordx2 s[36:37], s[0:1], 80")
    a("  v_lshrrev_b32 v1, 6, v0")
    a("  v_and_b32 v0, 63, v0")
    a("  v_readfirstlane_b32 s3, v1")
    a("  s_lshr_b32 s4, s2, 3")
    a("  s_and_b32 s5, s2, 7")
    a("  s_lshr_b32 s6, s5, 2")
    a("  s_and_b32 s7, s5, 3")
    a("  s_mov_b32 s11, s2")
    a("  v_mov_b32 v1, 0")
    a("  v_mov_b32 v2, 1")
    if cfg.stamps:
        a("  v_mov_b32 v15, 0")
    a("  s_cmp_eq_u32 s3, 3")
    a("  s_cbranch_scc0 L_noinit")
    if cfg.cpf:
        a("  s_getpc_b64 s[50:51]")
        a("L_pc0:")
        a(f"  s_sub_u32 s50, s50, L_pc0-{NAME}_kernel")
        a("  s_subb_u32 s51, s51, 0")
        a("  v_lshlrev_b32 v3, 7, v0")
        a(f"  v_min_u32 v4, L_end-{NAME}_kernel, v3")
        a("  global_load_dword v16, v4, s[50:51]")
        a("  v_add_u32 v3, 8192, v3")
        a(f"  v_min_u32 v4, L_end-{NAME}_kernel, v3")
        a("  global_load_dword v17, v4, s[50:51]")
    a("  v_lshlrev_b32 v3, 2, v0")
    a("  ds_write_b32 v3, v1")
    a("  s_waitcnt lgkmcnt(0)")
    a("L_noinit:")
    a("  s_barrier")
    a("  s_cmp_lt_u32 s3, 4")
    a("  s_cbranch_scc1 L_aux")
    a("  s_and_b32 s10, s3, 3")
    a("  s_lshl_b32 s12, s6, 26")
    a("  s_lshl_b32 s13, s4, 21")
    a("  s_add_u32 s12, s12, s13")
    a("  s_lshl_b32 s13, s7, 17")
    a("  s_add_u32 s12, s12, s13")
    a("  s_lshl_b32 s13, s10, 15")
    a("  s_add_u32 s12, s12, s13")
    a(f"  s_add_u32 s12, s12, {6144*256}")
    a("  v_lshlrev_b32 v3, 4, v0")
    a("  s_lshl_b32 s13, s10, 2")
    a("  v_mov_b32 v4, s13")
    a("  s_cmp_ge_u32 s3, 8")
    a("  s_cbranch_scc1 L_vpre")
    if cfg.prio:
        a("  s_setprio 1")
    a("  s_waitcnt lgkmcnt(0)")
    srd(40, 18, 0x8000000)
    a(f"  v_add_u32 v5, {F_KI}, v4")
    a("  s_branch L_issue")
    a("L_vpre:")
    a(f"  v_add_u32 v5, {F_VI}, v4")
    wait_lds(F_KI, 1, 8, n=4, sleep=4)
    srd(40, 20, 0x8000000)
    a("L_issue:")
    stamp(0)
    for t in range(32):
        if cfg.win and t >= cfg.win:
            a(f"  s_waitcnt vmcnt({cfg.win-1})")
        a(f"  buffer_load_dwordx4 v[{16+4*t}:{19+4*t}], v3, s[40:43], s12 offen offset:{(t&3)*1024} {cfg.nt_kv}")
        if (t & 3) == 3 and t < 31:
            a("  s_add_u32 s12, s12, 4096")
    a("  ds_write_b32 v5, v2")
    stamp(1)
    dbg(5, 4)
    a("  s_cmp_ge_u32 s3, 8")
    a("  s_cbranch_scc1 L_vwave")
    a("  s_branch L_kwave")

    a("L_aux:")
    if cfg.prio:
        a("  s_setprio 3")
    a("  s_cmp_eq_u32 s3, 2")
    a("  s_cbranch_scc1 L_aux2")
    a("  s_cmp_eq_u32 s3, 3")
    a("  s_cbranch_scc1 L_aux3")
    a("  v_lshrrev_b32 v3, 5, v0")
    a("  v_and_b32 v4, 31, v0")
    a("  v_mul_u32_u24 v5, 1280, v3")
    a("  v_lshl_add_u32 v6, v4, 3, v5")
    a("  v_min_u32 v7, 19, v4")
    a("  v_lshl_add_u32 v7, v7, 3, v5")
    a("  s_mul_i32 s8, s5, 160")
    a("  v_add_u32 v7, s8, v7")
    a("  v_lshrrev_b32 v8, 4, v0")
    a("  v_and_b32 v9, 15, v0")
    a("  s_waitcnt lgkmcnt(0)")
    stamp(0)
    for i in range(5):
        a(f"  global_load_dwordx2 v[{20+2*i}:{21+2*i}], v6, s[16:17] offset:{256*i}")
    a("  global_load_dwordx2 v[30:31], v7, s[16:17]")
    a("  s_cmp_eq_u32 s3, 1")
    a("  s_cbranch_scc1 L_iss1")
    srd(40, 22, 640 * 8192)
    a("  v_lshlrev_b32 v10, 13, v8")
    a("  v_lshl_add_u32 v10, v9, 4, v10")
    a("  s_mul_i32 s12, s5, 80*8192")
    a("  s_lshl_b32 s13, s4, 8")
    a("  s_add_u32 s12, s12, s13")
    for t in range(20):
        a(f"  buffer_load_dwordx4 v[{40+4*t}:{43+4*t}], v10, s[40:43], s12 offen {cfg.nt_w}")
        if t < 19:
            a("  s_add_u32 s12, s12, 32768")
    a("  s_branch L_ln")
    a("L_iss1:")
    srd(40, 28, 640 * 3456)
    a("  s_cmp_ge_u32 s4, 27")
    a("  s_cbranch_scc1 L_end")
    a("  v_mul_u32_u24 v10, 3456, v8")
    a("  v_lshl_add_u32 v10, v9, 3, v10")
    a("  s_mul_i32 s12, s5, 80*3456")
    a("  s_lshl_b32 s13, s4, 7")
    a("  s_add_u32 s12, s12, s13")
    for t in range(5):
        for u in range(4):
            pass
    for t in range(20):
        a(f"  buffer_load_dwordx2 v[{40+2*t}:{41+2*t}], v10, s[40:43], s12 offen {cfg.nt_w}")
        if t < 19:
            a("  s_add_u32 s12, s12, 13824")
    a("L_ln:")
    X = 120
    a("  s_mul_i32 s13, s3, 768")
    a("  v_mul_u32_u24 v143, 320, v3")
    a("  v_lshl_add_u32 v143, v4, 2, v143")
    a("  v_add_u32 v143, s13, v143")
    a("  s_waitcnt vmcnt(21)")
    for i in range(10):
        a(f"  v_lshlrev_b32 v{X+2*i}, 16, v{20+i}")
        a(f"  v_and_b32 v{X+2*i+1}, 0xffff0000, v{20+i}")
    for i in range(10):
        a(f"  v_add_f32 v{144+i}, v{X+2*i}, v{X+2*i+1}")
    for i in range(5):
        a(f"  v_add_f32 v{144+i}, v{144+i}, v{149+i}")
    a("  v_add_f32 v144, v144, v145")
    a("  v_add_f32 v146, v146, v147")
    a("  v_add_f32 v144, v144, v148")
    a("  v_add_f32 v140, v144, v146")

    def half_allreduce(v, t):
        wave_allreduce_row(v)
        a(f"  v_mov_b32 v{t}, v{v}")
        a(f"  v_permlane16_swap_b32 v{v}, v{t}")
        a(f"  v_add_f32 v{v}, v{v}, v{t}")

    def div640(v, t, e):
        a(f"  v_mul_f32 v{t}, 0x3acccccd, v{v}")
        a(f"  v_fma_f32 v{e}, v{t}, s12, v{v}")
        a(f"  v_fmac_f32 v{t}, 0x3acccccd, v{e}")
        a(f"  v_mov_b32 v{v}, v{t}")

    a("  s_mov_b32 s12, 0xc4200000")
    half_allreduce(140, 141)
    div640(140, 141, 142)
    for i in range(20):
        a(f"  v_sub_f32 v{X+i}, v{X+i}, v140")
    a(f"  v_mul_f32 v141, v{X}, v{X}")
    a(f"  v_mul_f32 v142, v{X+1}, v{X+1}")
    for i in range(2, 20, 2):
        a(f"  v_fmac_f32 v141, v{X+i}, v{X+i}")
        a(f"  v_fmac_f32 v142, v{X+i+1}, v{X+i+1}")
    a("  v_add_f32 v141, v141, v142")
    half_allreduce(141, 142)
    div640(141, 142, 144)
    rne(140, 140)
    rne(141, 141)
    a("  v_add_f32 v141, 0x3727c5ac, v141")
    rne(141, 141)
    a("  v_sqrt_f32 v141, v141")
    rne(141, 141)
    a("  v_rcp_f32 v142, v141")
    a("  s_waitcnt vmcnt(20)")
    a("  v_lshlrev_b32 v144, 16, v30")
    a("  v_and_b32 v145, 0xffff0000, v30")
    a("  v_lshlrev_b32 v146, 16, v31")
    a("  v_and_b32 v147, 0xffff0000, v31")
    for i in range(4):
        a(f"  v_sub_f32 v{144+i}, v{144+i}, v140")
    for i in range(4):
        rne(144 + i, 144 + i)
    for i in range(4):
        a(f"  v_mul_f32 v{148+i}, v{144+i}, v142")
    for i in range(4):
        a(f"  v_fma_f32 v{152+i}, -v{148+i}, v141, v{144+i}")
    for i in range(4):
        a(f"  v_fmac_f32 v{148+i}, v{152+i}, v142")
    for i in range(4):
        a(f"  v_cvt_pk_bf16_f32 v{148+i}, v{148+i}, v{148+i}")
    a("  s_mov_b32 exec_lo, 0xfffff")
    a("  s_mov_b32 exec_hi, 0xfffff")
    for g in range(4):
        a(f"  ds_write_b32 v143, v{148+g} offset:{L_XN+80*g}")
    a("  s_mov_b64 exec, -1")
    stub()

    def const_masks(nm, base, vt):
        a(f"  v_and_b32 v{vt}, 1, v0")
        a(f"  v_lshlrev_b32 v{vt}, 4, v{vt}")
        a(f"  v_mov_b32 v{vt+1}, 0xffff")
        a(f"  v_lshlrev_b32 v{vt}, v{vt}, v{vt+1}")
        a(f"  v_bfe_u32 v{vt+1}, v0, 1, {2 if nm == 4 else 1}")
        for j in range(nm):
            a(f"  v_cmp_eq_u32 vcc, {j}, v{vt+1}")
            a(f"  v_cndmask_b32 v{base+j}, 0, v{vt}, vcc")

    a("  s_cmp_eq_u32 s3, 1")
    a("  s_cbranch_scc1 L_aux1")
    a("L_aux0:")
    const_masks(4, 156, 160)
    a("  v_bfe_u32 v11, v0, 3, 1")
    a("  v_lshl_add_u32 v11, v11, 2, v8")
    a("  v_mul_u32_u24 v11, 80, v11")
    a("  s_waitcnt lgkmcnt(0)")
    for i in range(5):
        a(f"  ds_read_b128 v[{120+4*i}:{123+4*i}], v11 offset:{L_XN+16*i}")
    a("  v_lshrrev_b32 v12, 1, v8")
    a("  v_lshlrev_b32 v12, 9, v12")
    a("  v_lshl_add_u32 v12, v9, 5, v12")
    a("  v_and_b32 v13, 1, v8")
    a("  v_lshl_add_u32 v12, v13, 4, v12")
    a("  s_lshl_b32 s12, s11, 10")
    if E1Q:
        a(f"  s_add_u32 s12, s12, {E1Q}")
    a("  v_add_u32 v12, s12, v12")
    a("  v_mov_b32 v14, 0xff")
    a("  s_waitcnt lgkmcnt(0)")
    stamp(1)
    dbg(2)
    for t in range(20):
        A = 140 + 4 * (t & 1)
        for j in range(4):
            a(f"  v_and_b32 v{A+j}, v{120+t}, v{156+j}")
        a(f"  s_waitcnt vmcnt({19-t})")
        c = "0" if t == 0 else "v[148:151]"
        a(f"  v_mfma_f32_16x16x32_bf16 v[148:151], v[{A}:{A+3}], v[{40+4*t}:{43+4*t}], {c}")
    get_tag(16)
    tag4(148, 14)
    a("  global_store_dwordx4 v12, v[148:151], s[36:37] sc1")
    lane_tags(36, 16)
    stamp(2)
    dbg(3)
    a("  s_lshl_b32 s12, s4, 13")
    a("  s_lshl_b32 s13, s6, 9")
    a("  s_add_u32 s12, s12, s13")
    a(f"  s_add_u32 s12, s12, {E1Q+4096}")
    a("  v_lshlrev_b32 v12, 3, v0")
    a("  v_add_u32 v12, s12, v12")
    stamp(3)

    def iss():
        for p in range(8):
            a(f"  global_load_dwordx2 v[{20+2*p}:{21+2*p}], v12, s[36:37] offset:{p*1024-4096} sc1")
    poll_loop(iss, lambda: chk_tags([(20 + k, f"v{36 + (k & 1)}") for k in range(16)], 40), sleep=cfg.psleep)
    for p in range(1, 8):
        a(f"  v_add_f32 v20, v20, v{20+2*p}")
        a(f"  v_add_f32 v21, v21, v{21+2*p}")
    a("  v_cvt_pk_bf16_f32 v20, v20, v21")
    a("  v_lshlrev_b32 v12, 2, v0")
    a(f"  ds_write_b32 v12, v20 offset:{L_Q}")
    set_lds_flag(F_Q)
    stamp(4)
    dbg(4)
    stub()
    a("  s_lshl_b32 s12, s4, 1")
    a("  s_add_u32 s12, s12, s6")
    a("  s_lshl_b32 s12, s12, 7")
    a(f"  s_add_u32 s12, s12, {E2T}")
    a("  v_lshl_add_u32 v12, v9, 3, s12")
    wait_lds(F_KI, 1, 16, n=4, sleep=8)

    def iss2():
        a("  global_load_dwordx2 v[20:21], v12, s[36:37] sc1")

    def chk2():
        a("  v_xor_b32 v22, s88, v20")
        a("  v_and_b32 v22, 0xffff, v22")
        a("  v_xor_b32 v23, s82, v21")
        a("  v_and_b32 v23, 0xff, v23")
        a("  v_or_b32 v22, v22, v23")
        a("  v_cmp_ne_u32 vcc, 0, v22")
    poll_loop(iss2, chk2, sleep=cfg.psleep)
    stamp(5)
    a("  v_and_b32 v20, 0xffff0000, v20")
    a("  v_mov_b32 v22, v20")
    wave_allreduce_row(22, "v_max_f32")
    a("  v_sub_f32 v23, v20, v22")
    a("  v_mul_f32 v23, 0x3fb8aa3b, v23")
    a("  v_exp_f32 v23, v23")
    a("  v_mul_f32 v23, v23, v21")
    wave_allreduce_row(23)
    a("  v_rcp_f32 v24, v23")
    a("  v_fma_f32 v25, -v23, v24, 1.0")
    a("  v_fmac_f32 v24, v25, v24")
    a("  v_mov_b32 v23, v24")
    a(f"  ds_write_b64 v1, v[22:23] offset:{L_ML}")
    stamp(6)
    stamp_flush()
    a("  s_endpgm")
    stub(True)

    a("L_aux1:")
    const_masks(2, 156, 160)
    a("  v_bfe_u32 v11, v0, 2, 1")
    a("  v_lshl_add_u32 v11, v11, 2, v8")
    a("  v_mul_u32_u24 v11, 80, v11")
    a("  s_waitcnt lgkmcnt(0)")
    for i in range(5):
        a(f"  ds_read_b128 v[{120+4*i}:{123+4*i}], v11 offset:{L_XN+768+16*i}")
    a("  v_lshlrev_b32 v12, 8, v8")
    a("  v_lshl_add_u32 v12, v9, 4, v12")
    a("  s_lshl_b32 s12, s11, 9")
    a(f"  s_add_u32 s12, s12, {E1H}")
    a("  v_add_u32 v12, s12, v12")
    a("  v_mov_b32 v14, 0xff")
    a("  s_waitcnt lgkmcnt(0)")
    for t in range(20):
        A = 140 + 2 * (t & 1)
        for j in range(2):
            a(f"  v_and_b32 v{A+j}, v{120+t}, v{156+j}")
        a(f"  s_waitcnt vmcnt({19-t})")
        c = "0" if t == 0 else "v[148:151]"
        a(f"  v_mfma_f32_16x16x16_bf16 v[148:151], v[{A}:{A+1}], v[{40+2*t}:{41+2*t}], {c}")
    get_tag(16)
    tag4(148, 14)
    a("  s_mov_b64 exec, 0xffffffff")
    a("  global_store_dwordx4 v12, v[148:151], s[36:37] sc1")
    a("  s_mov_b64 exec, -1")
    lane_tags(36, 16)
    stamp(1)
    a("  s_cmp_lt_u32 s5, 5")
    a("  s_cbranch_scc1 L_aux1_done")
    a("  s_lshl_b32 s12, s4, 12")
    a(f"  s_add_u32 s12, s12, {E1H}")
    a("  v_lshlrev_b32 v12, 3, v0")
    a("  v_add_u32 v12, s12, v12")

    def iss3():
        for p in range(8):
            a(f"  global_load_dwordx2 v[{20+2*p}:{21+2*p}], v12, s[36:37] offset:{p*512} sc1")
    poll_loop(iss3, lambda: chk_tags([(20 + k, f"v{36 + (k & 1)}") for k in range(16)], 40), sleep=max(cfg.psleep, 4))
    for p in range(1, 8):
        a(f"  v_add_f32 v20, v20, v{20+2*p}")
        a(f"  v_add_f32 v21, v21, v{21+2*p}")
    a("  v_max_f32 v20, 0, v20")
    a("  v_max_f32 v21, 0, v21")
    a("  v_cvt_pk_bf16_f32 v20, v20, v21")
    a("  v_lshlrev_b32 v12, 2, v0")
    a(f"  ds_write_b32 v12, v20 offset:{L_HB}")
    set_lds_flag(F_H)
    a("L_aux1_done:")
    stamp(2)
    stamp_flush()
    a("  s_endpgm")
    stub(True)

    a("L_aux2:")
    a("  s_cmp_eq_u32 s11, 0")
    a("  s_cbranch_scc0 L_a2_poll")
    a("  s_memrealtime s[12:13]")
    a("  s_waitcnt lgkmcnt(0)")
    stamp(0)
    a("  s_mul_i32 s12, s12, 0x9e3779b1")
    a("  s_and_b32 s12, s12, 0x7f7f7f7f")
    a("  s_max_u32 s12, s12, 1")
    a("  v_mov_b32 v16, s12")
    a("  s_mov_b64 exec, 1")
    a("  global_store_dword v1, v16, s[34:35] sc1")
    a("  s_mov_b64 exec, -1")
    a(f"  ds_write_b32 v1, v16 offset:{F_TAG}")
    a("  s_branch L_a2_done")
    a("L_a2_poll:")
    a(f"  s_sleep {cfg.fsleep}")
    a("  s_waitcnt lgkmcnt(0)")
    stamp(0)
    L = lab("fl")
    D = lab("fld")
    a("  s_mov_b32 s9, 0")
    a(f"{L}:")
    a("  global_load_dword v16, v1, s[34:35] sc1")
    a("  s_waitcnt vmcnt(0)")
    a("  v_readfirstlane_b32 s12, v16")
    a("  s_cmp_lg_u32 s12, 0")
    a(f"  s_cbranch_scc1 {D}")
    a(f"  s_sleep {max(cfg.psleep, 4)}")
    a("  s_add_u32 s9, s9, 1")
    a(f"  s_cmp_lt_u32 s9, {cfg.spin_g}")
    a(f"  s_cbranch_scc1 {L}")
    a(f"{D}:")
    a(f"  ds_write_b32 v1, v16 offset:{F_TAG}")
    a("L_a2_done:")
    stamp(2)
    stamp_flush()
    a("  s_endpgm")
    stub(True)

    a("L_aux3:")
    if cfg.dbg:
        a("  s_waitcnt lgkmcnt(0)")
    dbg(1)
    dbg(11, None, True)
    if cfg.walk:
        if cfg.cpf:
            a("  s_waitcnt vmcnt(0)")
        a("  s_branch L_w0")
        a("L_wdone:")
    a("  s_waitcnt lgkmcnt(0)")
    stamp(0)
    a("  s_cmp_ge_u32 s11, 160")
    a("  s_cbranch_scc1 L_aux3_done")
    a("  s_cmp_ge_u32 s11, 80")
    a("  s_cselect_b32 s13, 1, 0")
    a("  s_mul_i32 s14, s13, 80")
    a("  s_sub_u32 s14, s11, s14")
    a("  v_and_b32 v3, 1, v0")
    a("  v_lshrrev_b32 v4, 4, v0")
    a("  v_lshl_add_u32 v5, v3, 2, v4")
    a("  s_mul_i32 s15, s13, 640")
    a("  s_lshl_b32 s8, s14, 3")
    a("  s_add_u32 s15, s15, s8")
    a("  v_add_u32 v5, s15, v5")
    a("  v_lshlrev_b32 v5, 1, v5")
    a("  global_load_ushort v6, v5, s[16:17]")
    a("  v_lshrrev_b32 v7, 1, v0")
    a("  v_mul_u32_u24 v8, 2560, v7")
    a("  v_lshl_add_u32 v8, v3, 4, v8")
    a(f"  s_mul_i32 s15, s13, {E3B}")
    a("  s_lshl_b32 s8, s14, 5")
    a("  s_add_u32 s15, s15, s8")
    a(f"  s_add_u32 s15, s15, {E3}")
    a("  v_add_u32 v8, s15, v8")
    for i in range(1, 6):
        a(f"  v_add_u32 v{8+i}, {81920*i}, v8")
    a("  v_cmp_gt_u32 s[48:49], 22, v7")
    a("  v_cndmask_b32 v13, v12, v13, s[48:49]")
    get_tag(16)
    L = lab("wo")
    D = lab("wod")
    a("  s_mov_b32 s9, 0")
    a(f"{L}:")
    a(f"  ds_read_b32 v16, v1 offset:{CNT_O}")
    a("  s_waitcnt lgkmcnt(0)")
    a("  v_readfirstlane_b32 s8, v16")
    a("  s_cmp_ge_u32 s8, 4")
    a(f"  s_cbranch_scc1 {D}")
    a("  s_sleep 4")
    a("  s_add_u32 s9, s9, 1")
    a(f"  s_cmp_lt_u32 s9, {SPIN_L}")
    a(f"  s_cbranch_scc1 {L}")
    a(f"{D}:")
    stamp(1)

    def iss6():
        for i in range(6):
            a(f"  global_load_dwordx4 v[{16+4*i}:{19+4*i}], v{8+i}, s[36:37] sc1")
    poll_loop(iss6, lambda: chk_tags([(16 + k, f"s{80 + (k & 3)}") for k in range(24)], 44), sleep=0)
    stamp(2)
    dbg(10)
    for r in range(4):
        a(f"  v_cndmask_b32 v{36+r}, 0, v{36+r}, s[48:49]")
    for r in range(4):
        a(f"  v_add_f32 v{16+r}, v{16+r}, v{20+r}")
        a(f"  v_add_f32 v{24+r}, v{24+r}, v{28+r}")
        a(f"  v_add_f32 v{32+r}, v{32+r}, v{36+r}")
    for r in range(4):
        a(f"  v_add_f32 v{16+r}, v{16+r}, v{24+r}")
    a("  v_permlane32_swap_b32 v16, v18")
    a("  v_permlane32_swap_b32 v17, v19")
    a("  v_permlane32_swap_b32 v32, v34")
    a("  v_permlane32_swap_b32 v33, v35")
    a("  v_add_f32 v16, v16, v18")
    a("  v_add_f32 v17, v17, v19")
    a("  v_add_f32 v32, v32, v34")
    a("  v_add_f32 v33, v33, v35")
    a("  v_permlane16_swap_b32 v16, v17")
    a("  v_permlane16_swap_b32 v32, v33")
    a("  v_add_f32 v16, v16, v17")
    a("  v_add_f32 v32, v32, v33")
    for r in (8, 4, 2):
        a(f"  v_add_f32_dpp v16, v16, v16 row_ror:{r} row_mask:0xf bank_mask:0xf")
        a(f"  v_add_f32_dpp v32, v32, v32 row_ror:{r} row_mask:0xf bank_mask:0xf")
    rne(16, 16)
    rne(32, 32)
    a("  v_mul_f32 v33, 0xbfb8aa3b, v32")
    a("  v_exp_f32 v33, v33")
    a("  v_add_f32 v33, 1.0, v33")
    a("  v_rcp_f32 v34, v33")
    a("  v_mul_f32 v35, v32, v34")
    a("  v_fma_f32 v36, -v35, v33, v32")
    a("  v_fmac_f32 v35, v36, v34")
    rne(35, 35)
    a("  v_mul_f32 v16, v16, v35")
    rne(16, 16)
    a("  v_lshlrev_b32 v6, 16, v6")
    a("  v_add_f32 v16, v6, v16")
    a("  v_cvt_pk_bf16_f32 v16, v16, v16")
    a("  s_mov_b32 exec_lo, 0x00030003")
    a("  s_mov_b32 exec_hi, 0x00030003")
    a("  global_store_short v5, v16, s[32:33] sc1")
    a("  s_mov_b64 exec, -1")
    dbg(12, None, True)
    dbg(13)
    a("L_aux3_done:")
    stamp(3)
    stamp_flush()
    a("  s_endpgm")
    stub(True)

    a("L_kwave:")
    a("  v_and_b32 v4, 15, v0")
    a("  v_lshlrev_b32 v5, 4, v4")
    a("  s_lshl_b32 s14, s11, 5")
    a("  s_lshl_b32 s15, s10, 3")
    a("  s_add_u32 s14, s14, s15")
    a(f"  s_add_u32 s14, s14, {E2T}")
    a("  v_mov_b32 v12, s14")
    a("  v_bfrev_b32 v11, v4")
    a("  v_lshrrev_b32 v11, 26, v11")
    a("  v_lshrrev_b32 v13, 4, v0")
    a("  v_lshl_add_u32 v11, v13, 7, v11")
    a("  s_lshl_b32 s14, s10, 9")
    a("  v_add_u32 v11, s14, v11")
    a("  v_and_b32 v6, 2, v0")
    a("  v_cmp_ne_u32 s[48:49], 0, v6")
    a("  v_and_b32 v6, 1, v0")
    a("  v_cmp_ne_u32 s[50:51], 0, v6")
    a("  v_mov_b32 v14, 0xff")
    get_tag(6)
    wait_lds(F_Q, 1, 6, sleep=1)
    a(f"  ds_read_b128 v[144:147], v5 offset:{L_Q}")
    a("  s_waitcnt lgkmcnt(0)")
    stamp(2)
    R = lambda t: 16 + 4 * t
    for G in range(8):
        t0 = 4 * G
        a(f"  s_waitcnt vmcnt({28-4*G})")
        for k in range(4):
            for t in range(t0, t0 + 4):
                c = "0" if k == 0 else f"v{R(t)}"
                a(f"  v_dot2_f32_bf16 v{R(t)}, v{R(t)+k}, v{144+k}, {c}")
        for t in (t0, t0 + 2):
            a(f"  v_add_f32_dpp v{R(t)}, v{R(t)}, v{R(t)} row_ror:8 row_mask:0xf bank_mask:0x3")
            a(f"  v_add_f32_dpp v{R(t)}, v{R(t+1)}, v{R(t+1)} row_ror:8 row_mask:0xf bank_mask:0xc")
        a(f"  v_add_f32_dpp v{R(t0)}, v{R(t0)}, v{R(t0)} row_half_mirror row_mask:0xf bank_mask:0x5")
        a(f"  v_add_f32_dpp v{R(t0)}, v{R(t0+2)}, v{R(t0+2)} row_half_mirror row_mask:0xf bank_mask:0xa")
        if G in (2, 6):
            stub()
    for i in range(4):
        x, y = R(8 * i), R(8 * i + 4)
        a(f"  v_cndmask_b32 v{x+1}, v{x}, v{y}, s[48:49]")
        a(f"  v_cndmask_b32 v{x+2}, v{y}, v{x}, s[48:49]")
    for i in range(4):
        x = R(8 * i)
        a(f"  v_add_f32_dpp v{x}, v{x+2}, v{x+1} quad_perm:[2,3,0,1] row_mask:0xf bank_mask:0xf")
    for i in range(2):
        x, y = R(16 * i), R(16 * i + 8)
        a(f"  v_cndmask_b32 v{x+1}, v{x}, v{y}, s[50:51]")
        a(f"  v_cndmask_b32 v{x+2}, v{y}, v{x}, s[50:51]")
    for i in range(2):
        x = R(16 * i)
        a(f"  v_add_f32_dpp v{x}, v{x+2}, v{x+1} quad_perm:[1,0,3,2] row_mask:0xf bank_mask:0xf")
    S0, S1 = R(0), R(16)
    a(f"  v_cvt_pk_bf16_f32 v6, v{S0}, v{S1}")
    a("  v_lshlrev_b32 v7, 16, v6")
    a("  v_and_b32 v8, 0xffff0000, v6")
    a("  v_mul_f32 v7, 0x3db504f3, v7")
    a("  v_mul_f32 v8, 0x3db504f3, v8")
    a("  v_cvt_pk_bf16_f32 v6, v7, v8")
    a("  v_lshlrev_b32 v148, 16, v6")
    a("  v_and_b32 v149, 0xffff0000, v6")
    a("  v_max_f32 v150, v148, v149")
    wave_allreduce_row(150, "v_max_f32")
    a("  v_mov_b32 v10, v150")
    a("  v_permlane16_swap_b32 v150, v10")
    a("  v_max_f32 v150, v150, v10")
    a("  v_mov_b32 v10, v150")
    a("  v_permlane32_swap_b32 v150, v10")
    a("  v_max_f32 v150, v150, v10")
    a("  v_sub_f32 v7, v148, v150")
    a("  v_sub_f32 v8, v149, v150")
    a("  v_mul_f32 v7, 0x3fb8aa3b, v7")
    a("  v_mul_f32 v8, 0x3fb8aa3b, v8")
    a("  v_exp_f32 v7, v7")
    a("  v_exp_f32 v8, v8")
    a("  v_add_f32 v151, v7, v8")
    wave_allreduce_row(151)
    a("  v_mov_b32 v10, v151")
    a("  v_permlane16_swap_b32 v151, v10")
    a("  v_add_f32 v151, v151, v10")
    a("  v_mov_b32 v10, v151")
    a("  v_permlane32_swap_b32 v151, v10")
    a("  v_add_f32 v151, v151, v10")
    a("  s_and_b32 s8, s88, 0xffff")
    a("  v_or_b32 v150, s8, v150")
    a("  v_add_u32 v151, s86, v151")
    a("  v_bfi_b32 v151, v14, s82, v151")
    a("  s_mov_b64 exec, 1")
    a("  global_store_dwordx2 v12, v[150:151], s[36:37] sc1")
    a("  s_mov_b64 exec, -1")
    stamp(3)
    dbg(6, 4)
    stub()
    a("  s_lshl_b32 s14, s5, 2")
    a("  s_add_u32 s14, s14, s10")
    tile_params(14)
    a("  v_lshrrev_b32 v8, 4, v0")
    a("  v_and_b32 v9, 15, v0")
    a("  v_mul_u32_u24 v10, 8*1280, v8")
    a("  v_lshl_add_u32 v10, v9, 4, v10")
    e3_lane_off(12, 13)
    a(f"  s_add_u32 s70, s70, {E3}")
    a("  v_add_u32 v12, s70, v12")
    a("  s_cmp_eq_u32 s72, 1")
    a("  s_cselect_b32 s44, s24, s30")
    a("  s_cselect_b32 s45, s25, s31")
    a("  s_and_b32 s45, s45, 0xffff")
    a(f"  s_mov_b32 s47, {1728*1280}")
    a(f"  s_cselect_b32 s46, {4096*1280}, s47")
    a("  s_mov_b32 s47, 0x20000")
    a("  s_add_u32 s13, s71, 5120")

    def tile_loads():
        for i in range(8):
            so = "s71" if i < 4 else "s13"
            a(f"  buffer_load_dwordx4 v[{16+4*i}:{19+4*i}], v10, s[44:47], {so} offen offset:{(i&3)*1280} {cfg.nt_wo}")
    L = lab("ml")
    D = lab("mld")
    a("  s_mov_b32 s9, 0")
    a(f"{L}:")
    a(f"  ds_read_b64 v[150:151], v1 offset:{L_ML}")
    a("  s_waitcnt lgkmcnt(0)")
    a("  v_readfirstlane_b32 s8, v151")
    a("  s_cmp_lg_u32 s8, 0")
    a(f"  s_cbranch_scc1 {D}")
    a("  s_sleep 1")
    a("  s_add_u32 s9, s9, 1")
    a(f"  s_cmp_lt_u32 s9, {SPIN_L}")
    a(f"  s_cbranch_scc1 {L}")
    a(f"{D}:")
    stamp(4)
    a("  v_sub_f32 v7, v148, v150")
    a("  v_sub_f32 v6, v149, v150")
    a("  v_mul_f32 v7, 0x3fb8aa3b, v7")
    a("  v_mul_f32 v6, 0x3fb8aa3b, v6")
    a("  v_exp_f32 v7, v7")
    a("  v_exp_f32 v6, v6")
    a("  v_mul_f32 v7, v7, v151")
    a("  v_mul_f32 v6, v6, v151")
    a("  v_cvt_pk_bf16_f32 v7, v7, v7")
    a("  v_cvt_pk_bf16_f32 v6, v6, v6")
    a(f"  ds_write_b32 v11, v7 offset:{L_P}")
    a(f"  ds_write_b32 v11, v6 offset:{L_P+64}")
    a("  s_lshl_b32 s12, s10, 2")
    a("  v_mov_b32 v13, s12")
    a(f"  ds_write_b32 v13, v2 offset:{F_P}")
    stamp(5)
    dbg(7, 4)
    a("  s_cmp_eq_u32 s72, 0")
    a("  s_cbranch_scc1 L_k_done")
    LG = lab("tg")
    g1 = cfg.gate_wo
    g2 = cfg.gate_w2
    if g1 != g2:
        a(f"  s_cmp_eq_u32 s72, {2 if g1 else 1}")
        a(f"  s_cbranch_scc1 {LG}")
    if g1 or g2:
        wait_lds(F_VI, 1, 144, n=4, sleep=2)
    a(f"{LG}:")
    tile_loads()
    a("  v_and_b32 v3, 3, v0")
    a("  v_lshlrev_b32 v3, 9, v3")
    a("  v_bfe_u32 v4, v0, 3, 1")
    a("  v_lshl_add_u32 v3, v4, 11, v3")
    a("  v_bfe_u32 v4, v0, 2, 1")
    a("  v_lshl_add_u32 v3, v4, 4, v3")
    a("  v_lshl_add_u32 v3, v8, 5, v3")
    a("  s_lshl_b32 s14, s4, 12")
    a("  s_lshl_b32 s15, s74, 7")
    a("  s_add_u32 s14, s14, s15")
    a(f"  s_add_u32 s14, s14, {E2O}")
    a("  v_add_u32 v3, s14, v3")
    a("  v_bfe_u32 v4, v0, 3, 1")
    a("  v_lshlrev_b32 v4, 7, v4")
    a("  v_lshl_add_u32 v4, v8, 4, v4")
    a("  s_lshl_b32 s14, s74, 6")
    a("  v_add_u32 v4, s14, v4")
    a("  v_bfe_u32 v5, v0, 4, 1")
    a("  v_cmp_eq_u32 s[48:49], 0, v5")
    a("  v_bfe_u32 v5, v0, 2, 1")
    a("  v_cmp_eq_u32 s[52:53], 0, v5")
    a("  s_mov_b32 s14, 0x05040100")
    a("  s_mov_b32 s15, 0x07060302")
    a("  s_waitcnt vmcnt(0)")
    stamp(6)
    for d in range(4):
        for q in range(4):
            ev = 16 + 4 * (2 * q) + d
            od = 16 + 4 * (2 * q + 1) + d
            a(f"  v_perm_b32 v{48+4*(2*d)+q}, v{od}, v{ev}, s14")
            a(f"  v_perm_b32 v{48+4*(2*d+1)+q}, v{od}, v{ev}, s15")
    stub()
    a("  s_cmp_eq_u32 s72, 1")
    a("  s_cbranch_scc1 L_t_wo")
    wait_lds(F_H, 1, 144, sleep=2)
    a(f"  ds_read_b128 v[112:115], v4 offset:{L_HB}")
    a("  s_waitcnt lgkmcnt(0)")
    a("  s_branch L_t_mm")
    a("L_t_wo:")

    def iss7():
        a("  global_load_dwordx4 v[80:83], v3, s[36:37] sc1")
    poll_loop(iss7, lambda: chk_tags([(80 + k, f"s{80 + k}") for k in range(4)], 84), sleep=0)
    stamp(7)
    for r in range(4):
        a(f"  v_add_f32_dpp v{80+r}, v{80+r}, v{80+r} quad_perm:[1,0,3,2] row_mask:0xf bank_mask:0xf")
    for r in range(4):
        a(f"  v_add_f32_dpp v{80+r}, v{80+r}, v{80+r} quad_perm:[2,3,0,1] row_mask:0xf bank_mask:0xf")
    a("  v_cvt_pk_bf16_f32 v112, v80, v81")
    a("  v_cvt_pk_bf16_f32 v113, v82, v83")
    a("  v_mov_b32 v114, v112")
    a("  v_mov_b32 v115, v113")
    a("  v_mov_b32_dpp v84, v112 row_half_mirror row_mask:0xf bank_mask:0xf")
    a("  v_mov_b32_dpp v85, v113 row_half_mirror row_mask:0xf bank_mask:0xf")
    a("  v_cndmask_b32 v112, v84, v112, s[52:53]")
    a("  v_cndmask_b32 v113, v85, v113, s[52:53]")
    a("  v_cndmask_b32 v114, v114, v84, s[52:53]")
    a("  v_cndmask_b32 v115, v115, v85, s[52:53]")
    a("L_t_mm:")
    for x in range(8):
        a(f"  v_mfma_f32_16x16x32_bf16 v[{116+4*x}:{119+4*x}], v[112:115], v[{48+4*x}:{51+4*x}], 0")
    for r in range(4):
        a(f"  v_cndmask_b32 v{80+r}, v{116+4*(4+r)}, v{116+4*r}, s[48:49]")
    tag4(80, 14)
    a("  global_store_dwordx4 v12, v[80:83], s[36:37] sc1")
    a("L_k_done:")
    stamp(8)
    dbg(9, 4)
    stamp_flush()
    a("  s_endpgm")
    stub(True)

    a("L_vwave:")
    const_masks(4, 160, 6)
    a("  v_lshrrev_b32 v6, 4, v0")
    a("  v_lshlrev_b32 v6, 7, v6")
    a("  s_lshl_b32 s12, s10, 9")
    a("  v_add_u32 v6, s12, v6")
    a("  v_and_b32 v7, 15, v0")
    a("  v_lshlrev_b32 v7, 5, v7")
    a("  v_bfe_u32 v8, v0, 4, 1")
    a("  v_lshl_add_u32 v7, v8, 4, v7")
    a("  v_add_u32 v7, s12, v7")
    a("  s_lshl_b32 s12, s11, 9")
    a(f"  s_add_u32 s12, s12, {E2O}")
    a("  v_lshl_add_u32 v9, v0, 4, s12")
    a("  v_lshlrev_b32 v10, 4, v0")
    a("  v_mov_b32 v11, 0xff")
    get_tag(8)
    wait_lds(F_P, 4, 8, sleep=1)
    a(f"  ds_read_b128 v[144:147], v6 offset:{L_P}")
    stamp(2)
    for q in range(8):
        pb = 144 + 4 * (q & 1)
        if q < 7:
            nb = 144 + 4 * ((q + 1) & 1)
            a(f"  ds_read_b128 v[{nb}:{nb+3}], v6 offset:{L_P+16*(q+1)}")
            a("  s_waitcnt lgkmcnt(1)")
        else:
            a("  s_waitcnt lgkmcnt(0)")
        for u in range(4):
            t = 4 * q + u
            A = 152 + 4 * (t & 1)
            for j in range(4):
                a(f"  v_and_b32 v{A+j}, v{pb+u}, v{160+j}")
            a(f"  s_waitcnt vmcnt({31-t})")
            c = "0" if t == 0 else "v[164:167]"
            a(f"  v_mfma_f32_16x16x32_bf16 v[164:167], v[{A}:{A+3}], v[{16+4*t}:{19+4*t}], {c}")
        if q == 3:
            stub()
    stamp(3)
    dbg(8, 8)
    a("  s_mov_b64 exec, 0xffffffff")
    a(f"  ds_write_b128 v7, v[164:167] offset:{L_O}")
    a("  s_mov_b64 exec, 1")
    a(f"  ds_add_rtn_u32 v8, v1, v2 offset:{CNT_O}")
    a("  s_mov_b64 exec, -1")
    a("  s_waitcnt lgkmcnt(0)")
    a("  v_readfirstlane_b32 s8, v8")
    a("  s_cmp_eq_u32 s8, 3")
    a("  s_cbranch_scc0 L_v_done")
    a("  s_mov_b64 exec, 0xffffffff")
    for w in range(4):
        a(f"  ds_read_b128 v[{16+4*w}:{19+4*w}], v10 offset:{L_O+512*w}")
    a("  s_waitcnt lgkmcnt(0)")
    for r in range(4):
        a(f"  v_add_f32 v{16+r}, v{16+r}, v{20+r}")
        a(f"  v_add_f32 v{24+r}, v{24+r}, v{28+r}")
    for r in range(4):
        a(f"  v_add_f32 v{16+r}, v{16+r}, v{24+r}")
    tag4(16, 11)
    a("  global_store_dwordx4 v9, v[16:19], s[36:37] sc1")
    a("  s_mov_b64 exec, -1")
    a("L_v_done:")
    stamp(4)
    stamp_flush()
    a("  s_endpgm")
    if cfg.walk:
        a(f"L_w{nstub[0]}:")
        a("  s_branch L_wdone")
    a("L_end:")
    a("  s_endpgm")
    a('.section .rodata,"a"')
    a(".p2align 6")
    a(f".amdhsa_kernel {NAME}_kernel")
    a("  .amdhsa_next_free_vgpr 168")
    a("  .amdhsa_next_free_sgpr 96")
    a("  .amdhsa_accum_offset 168")
    a("  .amdhsa_group_segment_fixed_size 0")
    a("  .amdhsa_kernarg_size 88")
    a("  .amdhsa_user_sgpr_count 2")
    a("  .amdhsa_user_sgpr_kernarg_segment_ptr 1")
    a("  .amdhsa_system_sgpr_workgroup_id_x 1")
    a(".end_amdhsa_kernel")
    return a.resolve() + "\n"


if __name__ == "__main__":
    out = sys.argv[1] if len(sys.argv) > 1 else f"cdna_kernels/{NAME}.s"

    class C(Cfg):
        pass
    for kv in sys.argv[2:]:
        k, v = kv.split("=")
        cur = getattr(C, k)
        if isinstance(cur, bool):
            v = v in ("1", "True", "true")
        elif isinstance(cur, int):
            v = int(v)
        setattr(C, k, v)
    open(out, "w").write(gen(C))
```

```python
import sys, os
sys.path.insert(0, "work")
from asmlib import Asm

NAME = "recurrent_scan__sliding_block_cached__dense_activation_relu__decode"

E1Q = 0x0
E1H = 0x40000
E2T = 0x60000
E2O = 0x64000
E3A = 0x90000
E3F = 0xB8000
TS = 0x400000

F_Q, F_TAG, F_H, CNT_O, CNT_E, F_E3 = 0, 4, 12, 16, 20, 24
F_P, F_KI, F_VI, F_SP = 32, 48, 64, 80
L_ML = 96
L_Q, L_HB, L_XN, L_P, L_O, L_R = 256, 512, 1024, 2560, 4608, 6656
LDS_BYTES = 12288

SPIN_L = 1 << 21


class Cfg:
    nt_kv = "nt"
    nt_w = "nt"
    nt_wo = "nt"
    stamps = False
    subsec = False
    pad = 0
    dbg = False
    prio = True
    win = 8
    spin_g = 1 << 17
    cpf = True
    walk = True
    gate_wo = True
    gate_w2 = True
    psleep = 2
    fsleep = 20
    p_q = 10
    p_h = 20
    p_s = 10
    p_o = 6
    p_f = 12
    p_a = 5


def gen(cfg=Cfg):
    a = Asm()
    uid = [0]
    nstub = [0]

    def lab(p):
        uid[0] += 1
        return f"L_{p}_{uid[0]}"

    def stub(natural=False):
        if not cfg.walk:
            return
        k = nstub[0]
        nstub[0] += 1
        if not natural:
            a(f"  s_branch L_wsk{k}")
        a(f"L_w{k}:")
        a(f"  s_branch L_w{k+1}")
        if not natural:
            a(f"L_wsk{k}:")

    def stamp(i):
        if not cfg.stamps:
            return
        a("  s_memrealtime s[62:63]")
        a("  s_waitcnt lgkmcnt(0)")
        a(f"  v_writelane_b32 v15, s62, {i}")

    def dbg(k, wave=None, clk=False):
        if not cfg.dbg:
            return
        D = lab("dbg")
        a("  s_cmp_eq_u32 s11, 0")
        a(f"  s_cbranch_scc0 {D}")
        if wave is not None:
            a(f"  s_cmp_eq_u32 s3, {wave}")
            a(f"  s_cbranch_scc0 {D}")
        a("  s_memtime s[62:63]" if clk else "  s_memrealtime s[62:63]")
        a("  s_waitcnt lgkmcnt(0)")
        a("  v_mov_b32 v15, s62")
        a("  s_mov_b64 exec, 1")
        a(f"  global_store_dword v1, v15, s[34:35] offset:{4*k}")
        a("  s_mov_b64 exec, -1")
        a(f"{D}:")

    def stamp_flush():
        if not cfg.stamps:
            return
        a("  s_mul_i32 s62, s2, 12")
        a("  s_add_u32 s62, s62, s3")
        a("  s_lshl_b32 s62, s62, 6")
        a(f"  s_add_u32 s62, s62, {TS}")
        a("  v_lshlrev_b32 v14, 2, v0")
        a("  v_add_u32 v14, s62, v14")
        a("  s_mov_b64 exec, 0xffff")
        a("  global_store_dword v14, v15, s[36:37]")
        a("  s_mov_b64 exec, -1")

    def srd(base, lo, size):
        a(f"  s_mov_b32 s{base}, s{lo}")
        a(f"  s_and_b32 s{base+1}, s{lo+1}, 0xffff")
        a(f"  s_mov_b32 s{base+2}, {size}")
        a(f"  s_mov_b32 s{base+3}, 0x20000")

    def wait_lds(off, vz, vt, n=1, sleep=2):
        L = lab("wl")
        D = lab("wld")
        a("  s_mov_b32 s9, 0")
        a(f"{L}:")
        if n == 1:
            a(f"  ds_read_b32 v{vt}, v{vz} offset:{off}")
            a("  s_waitcnt lgkmcnt(0)")
        else:
            a(f"  ds_read_b128 v[{vt}:{vt+3}], v{vz} offset:{off}")
            a("  s_waitcnt lgkmcnt(0)")
            a(f"  v_and_b32 v{vt}, v{vt}, v{vt+1}")
            a(f"  v_and_b32 v{vt+2}, v{vt+2}, v{vt+3}")
            a(f"  v_and_b32 v{vt}, v{vt}, v{vt+2}")
        a(f"  v_readfirstlane_b32 s8, v{vt}")
        a("  s_cmp_lg_u32 s8, 0")
        a(f"  s_cbranch_scc1 {D}")
        if sleep:
            a(f"  s_sleep {sleep}")
        a("  s_add_u32 s9, s9, 1")
        a(f"  s_cmp_lt_u32 s9, {SPIN_L}")
        a(f"  s_cbranch_scc1 {L}")
        a(f"{D}:")

    def wait_cnt(off, n, vt, sleep=2):
        L = lab("wc")
        D = lab("wcd")
        a("  s_mov_b32 s9, 0")
        a(f"{L}:")
        a(f"  ds_read_b32 v{vt}, v1 offset:{off}")
        a("  s_waitcnt lgkmcnt(0)")
        a(f"  v_readfirstlane_b32 s8, v{vt}")
        a(f"  s_cmp_ge_u32 s8, {n}")
        a(f"  s_cbranch_scc1 {D}")
        a(f"  s_sleep {sleep}")
        a("  s_add_u32 s9, s9, 1")
        a(f"  s_cmp_lt_u32 s9, {SPIN_L}")
        a(f"  s_cbranch_scc1 {L}")
        a(f"{D}:")

    def set_lds_flag(off, vz=1, vone=2):
        a(f"  ds_write_b32 v{vz}, v{vone} offset:{off}")

    def wave_allreduce_row(v, op="v_add_f32"):
        for r in (8, 4, 2, 1):
            a(f"  {op}_dpp v{v}, v{v}, v{v} row_ror:{r} row_mask:0xf bank_mask:0xf")

    def rne(dst, src):
        a(f"  v_cvt_pk_bf16_f32 v{dst}, v{src}, v{src}")
        a(f"  v_lshlrev_b32 v{dst}, 16, v{dst}")

    def get_tag(vt):
        wait_lds(F_TAG, 1, vt, sleep=1)
        a("  s_mov_b32 s88, s8")
        for i in range(4):
            a(f"  s_bfe_u32 s{80+i}, s8, {(8 << 16) | (8 * i)}")
            a(f"  s_sub_u32 s{84+i}, 0x80, s{80+i}")
        a("  s_mov_b32 s89, 0x0c0c0400")
        a("  s_mov_b32 s90, 0x04000c0c")

    def tag4(base, vff):
        for r in range(4):
            a(f"  v_add_u32 v{base+r}, s{84+r}, v{base+r}")
        for r in range(4):
            a(f"  v_bfi_b32 v{base+r}, v{vff}, s{80+r}, v{base+r}")

    def chk_tags(pairs, t):
        first = True
        k = 0
        while k < len(pairs):
            if first:
                a(f"  v_xor_b32 v{t}, {pairs[k][1]}, v{pairs[k][0]}")
                k += 1
                first = False
            elif len(pairs) - k >= 2:
                a(f"  v_xor_b32 v{t+1}, {pairs[k][1]}, v{pairs[k][0]}")
                a(f"  v_xor_b32 v{t+2}, {pairs[k+1][1]}, v{pairs[k+1][0]}")
                a(f"  v_or3_b32 v{t}, v{t}, v{t+1}, v{t+2}")
                k += 2
            else:
                a(f"  v_xor_b32 v{t+1}, {pairs[k][1]}, v{pairs[k][0]}")
                a(f"  v_or_b32 v{t}, v{t}, v{t+1}")
                k += 1
        a(f"  v_and_b32 v{t}, 0xff, v{t}")
        a(f"  v_cmp_ne_u32 vcc, 0, v{t}")

    def lane_tags(vd, vt):
        a(f"  v_and_b32 v{vt}, 1, v0")
        a(f"  v_lshlrev_b32 v{vt}, 4, v{vt}")
        a(f"  v_lshrrev_b32_e64 v{vd}, v{vt}, s88")
        a(f"  v_and_b32 v{vd}, 0xffff, v{vd}")

    def tpoll(n, issue, check, mbase, period, init=None):
        L = lab("tp")
        D = lab("tpd")
        for i in range(n):
            a(f"  s_mov_b64 s[{mbase+2*i}:{mbase+2*i+1}], {init[i] if init else -1}")
        a("  s_mov_b32 s9, 0")
        a(f"{L}:")
        for i in range(n):
            a(f"  s_mov_b64 exec, s[{mbase+2*i}:{mbase+2*i+1}]")
            issue(i)
        a("  s_mov_b64 exec, -1")
        a(f"  s_sleep {period}")
        for i in range(n):
            check(i, f"s[{mbase+2*i}:{mbase+2*i+1}]")
        if n == 1:
            a(f"  s_cmp_eq_u64 s[{mbase}:{mbase+1}], 0")
            a(f"  s_cbranch_scc1 {D}")
        else:
            a(f"  s_or_b64 s[12:13], s[{mbase}:{mbase+1}], s[{mbase+2}:{mbase+3}]")
            for i in range(2, n):
                a(f"  s_or_b64 s[12:13], s[12:13], s[{mbase+2*i}:{mbase+2*i+1}]")
            a(f"  s_cbranch_scc0 {D}")
        a("  s_add_u32 s9, s9, 1")
        a(f"  s_cmp_lt_u32 s9, {cfg.spin_g}")
        a(f"  s_cbranch_scc1 {L}")
        a(f"{D}:")

    def chk4(base, t, m):
        a(f"  v_perm_b32 v{t}, v{base+1}, v{base}, s89")
        a(f"  v_perm_b32 v{t+1}, v{base+3}, v{base+2}, s90")
        a(f"  v_or_b32 v{t}, v{t}, v{t+1}")
        a(f"  v_cmp_ne_u32_e64 {m}, s88, v{t}")

    def chk2l(base, t, vexp, m):
        a(f"  v_perm_b32 v{t}, v{base+1}, v{base}, s89")
        a(f"  v_cmp_ne_u32_e64 {m}, v{vexp}, v{t}")

    def inval(regs):
        for r in regs:
            a(f"  v_mov_b32 v{r}, 0x80")

    def poll_loop(issue, check, sleep=0):
        L = lab("pl")
        D = lab("pld")
        a("  s_mov_b32 s9, 0")
        a(f"{L}:")
        issue()
        a("  s_waitcnt vmcnt(0)")
        check()
        a(f"  s_cbranch_vccz {D}")
        if sleep:
            a(f"  s_sleep {sleep}")
        a("  s_add_u32 s9, s9, 1")
        a(f"  s_cmp_lt_u32 s9, {cfg.spin_g}")
        a(f"  s_cbranch_scc1 {L}")
        a(f"{D}:")

    def max_tree(regs, t):
        regs = list(regs)
        k = 0
        while len(regs) > 1:
            new = []
            i = 0
            while i < len(regs):
                if len(regs) - i >= 3:
                    a(f"  v_max3_u32 v{t+k}, v{regs[i]}, v{regs[i+1]}, v{regs[i+2]}")
                    new.append(t + k); k += 1; i += 3
                elif len(regs) - i == 2:
                    a(f"  v_max_u32 v{t+k}, v{regs[i]}, v{regs[i+1]}")
                    new.append(t + k); k += 1; i += 2
                else:
                    new.append(regs[i]); i += 1
            regs = new
        a(f"  v_cmp_eq_u32 vcc, -1, v{regs[0]}")

    def tile_params(si):
        a(f"  s_sub_u32 s75, s{si}, 20")
        a(f"  s_cmp_lt_u32 s{si}, 20")
        a(f"  s_cselect_b32 s75, s{si}, s75")
        a("  s_cselect_b32 s76, 2, 1")
        a("  s_cselect_b32 s72, 1, 2")
        a(f"  s_mov_b32 s70, {E3F}")
        a(f"  s_cselect_b32 s70, {E3A}, s70")
        a("  s_lshr_b32 s73, s75, s76")
        a("  s_lshl_b32 s74, s73, s76")
        a("  s_sub_u32 s74, s75, s74")
        a("  s_lshl_b32 s75, s4, s76")
        a("  s_add_u32 s75, s75, s74")
        a("  s_mul_i32 s71, s75, 32*1280")
        a(f"  s_cmp_lt_u32 s{si}, 20")
        a("  s_cselect_b32 s75, s4, s75")
        a("  s_mul_i32 s75, s75, 5120")
        a("  s_add_u32 s70, s70, s75")
        a("  s_lshl_b32 s75, s73, 10")
        a("  s_add_u32 s70, s70, s75")
        a("  s_lshl_b32 s75, s73, 8")
        a("  s_add_u32 s71, s71, s75")
        a("  s_cmp_ge_u32 s73, 5")
        a("  s_cselect_b32 s75, 0, 2")
        a("  s_cmp_ge_u32 s4, 27")
        a("  s_cselect_b32 s75, 0, s75")
        a("  s_cmp_eq_u32 s72, 2")
        a("  s_cselect_b32 s72, s75, s72")

    def e3_lane_off(vd, vt):
        a(f"  v_and_b32 v{vt}, 15, v0")
        a(f"  v_lshrrev_b32 v{vd}, 4, v0")
        a(f"  v_lshlrev_b32 v{vd}, 4, v{vd}")
        a(f"  v_lshl_add_u32 v{vd}, v{vt}, 6, v{vd}")

    a(f"; @launch grid=(256,1,1) block=(768,1,1) lds={LDS_BYTES}")
    a('.amdgcn_target "amdgcn-amd-amdhsa--gfx950"')
    a(".text")
    if cfg.subsec:
        a(".subsection 1")
    a(f".globl {NAME}_kernel")
    a(".p2align 8")
    a(f".type {NAME}_kernel,@function")
    a(f"{NAME}_kernel:")
    a("  s_cmp_ge_u32 s2, 256")
    a("  s_cbranch_scc1 L_end")
    if cfg.pad:
        a("  s_memrealtime s[96:97]")
    a("  s_load_dwordx16 s[16:31], s[0:1], 0")
    a("  s_load_dwordx4 s[32:35], s[0:1], 64")
    a("  s_load_dwordx2 s[36:37], s[0:1], 80")
    a("  v_lshrrev_b32 v1, 6, v0")
    a("  v_and_b32 v0, 63, v0")
    a("  v_readfirstlane_b32 s3, v1")
    a("  s_lshr_b32 s4, s2, 3")
    a("  s_and_b32 s5, s2, 7")
    a("  s_lshr_b32 s6, s5, 2")
    a("  s_and_b32 s7, s5, 3")
    a("  s_mov_b32 s11, s2")
    a("  v_mov_b32 v1, 0")
    a("  v_mov_b32 v2, 1")
    if cfg.stamps:
        a("  v_mov_b32 v15, 0")
    a("  s_cmp_eq_u32 s3, 3")
    a("  s_cbranch_scc0 L_noinit")
    if cfg.cpf:
        a("  s_getpc_b64 s[50:51]")
        a("L_pc0:")
        a(f"  s_sub_u32 s50, s50, L_pc0-{NAME}_kernel")
        a("  s_subb_u32 s51, s51, 0")
        a("  v_lshlrev_b32 v3, 7, v0")
        a(f"  v_min_u32 v4, L_end-{NAME}_kernel, v3")
        a("  global_load_dword v16, v4, s[50:51]")
        a("  v_add_u32 v3, 8192, v3")
        a(f"  v_min_u32 v4, L_end-{NAME}_kernel, v3")
        a("  global_load_dword v17, v4, s[50:51]")
    a("  v_lshlrev_b32 v3, 2, v0")
    a("  ds_write_b32 v3, v1")
    a("  s_waitcnt lgkmcnt(0)")
    a("L_noinit:")
    a("  s_barrier")
    a("  s_cmp_lt_u32 s3, 4")
    a("  s_cbranch_scc1 L_aux")
    a("  s_and_b32 s10, s3, 3")
    a("  s_lshl_b32 s12, s6, 26")
    a("  s_lshl_b32 s13, s4, 21")
    a("  s_add_u32 s12, s12, s13")
    a("  s_lshl_b32 s13, s7, 17")
    a("  s_add_u32 s12, s12, s13")
    a("  s_lshl_b32 s13, s10, 15")
    a("  s_add_u32 s12, s12, s13")
    a(f"  s_add_u32 s12, s12, {6144*256}")
    a("  v_lshlrev_b32 v3, 4, v0")
    a("  s_lshl_b32 s13, s10, 2")
    a("  v_mov_b32 v4, s13")
    a("  s_cmp_ge_u32 s3, 8")
    a("  s_cbranch_scc1 L_vpre")
    if cfg.prio:
        a("  s_setprio 1")
    a("  s_waitcnt lgkmcnt(0)")
    srd(40, 18, 0x8000000)
    a(f"  v_add_u32 v5, {F_KI}, v4")
    a("  s_branch L_issue")
    a("L_vpre:")
    a(f"  v_add_u32 v5, {F_VI}, v4")
    wait_lds(F_KI, 1, 8, n=4, sleep=4)
    srd(40, 20, 0x8000000)
    a("L_issue:")
    stamp(0)
    for t in range(32):
        if cfg.win and t >= cfg.win:
            a(f"  s_waitcnt vmcnt({cfg.win-1})")
        a(f"  buffer_load_dwordx4 v[{16+4*t}:{19+4*t}], v3, s[40:43], s12 offen offset:{(t&3)*1024} {cfg.nt_kv}")
        if (t & 3) == 3 and t < 31:
            a("  s_add_u32 s12, s12, 4096")
    a("  ds_write_b32 v5, v2")
    stamp(1)
    dbg(5, 4)
    a("  s_cmp_ge_u32 s3, 8")
    a("  s_cbranch_scc1 L_vwave")
    a("  s_branch L_kwave")

    a("L_aux:")
    if cfg.prio:
        a("  s_setprio 3")
    a("  s_cmp_eq_u32 s3, 2")
    a("  s_cbranch_scc1 L_aux2")
    a("  s_cmp_eq_u32 s3, 3")
    a("  s_cbranch_scc1 L_aux3")
    a("  v_lshrrev_b32 v3, 5, v0")
    a("  v_and_b32 v4, 31, v0")
    a("  v_mul_u32_u24 v5, 1280, v3")
    a("  v_lshl_add_u32 v6, v4, 3, v5")
    a("  v_min_u32 v7, 19, v4")
    a("  v_lshl_add_u32 v7, v7, 3, v5")
    a("  s_mul_i32 s8, s5, 160")
    a("  v_add_u32 v7, s8, v7")
    a("  v_lshrrev_b32 v8, 4, v0")
    a("  v_and_b32 v9, 15, v0")
    a("  s_waitcnt lgkmcnt(0)")
    stamp(0)
    for i in range(5):
        a(f"  global_load_dwordx2 v[{20+2*i}:{21+2*i}], v6, s[16:17] offset:{256*i}")
    a("  global_load_dwordx2 v[30:31], v7, s[16:17]")
    a("  s_cmp_eq_u32 s3, 1")
    a("  s_cbranch_scc1 L_iss1")
    srd(40, 22, 640 * 8192)
    a("  v_lshlrev_b32 v10, 13, v8")
    a("  v_lshl_add_u32 v10, v9, 4, v10")
    a("  s_mul_i32 s12, s5, 80*8192")
    a("  s_lshl_b32 s13, s4, 8")
    a("  s_add_u32 s12, s12, s13")
    for t in range(20):
        a(f"  buffer_load_dwordx4 v[{40+4*t}:{43+4*t}], v10, s[40:43], s12 offen {cfg.nt_w}")
        if t < 19:
            a("  s_add_u32 s12, s12, 32768")
    a("  s_branch L_ln")
    a("L_iss1:")
    srd(40, 28, 640 * 3456)
    a("  s_cmp_ge_u32 s4, 27")
    a("  s_cbranch_scc1 L_end")
    a("  v_mul_u32_u24 v10, 3456, v8")
    a("  v_lshl_add_u32 v10, v9, 3, v10")
    a("  s_mul_i32 s12, s5, 80*3456")
    a("  s_lshl_b32 s13, s4, 7")
    a("  s_add_u32 s12, s12, s13")
    for t in range(5):
        for u in range(4):
            pass
    for t in range(20):
        a(f"  buffer_load_dwordx2 v[{40+2*t}:{41+2*t}], v10, s[40:43], s12 offen {cfg.nt_w}")
        if t < 19:
            a("  s_add_u32 s12, s12, 13824")
    stub()
    a("L_ln:")
    X = 120
    a("  s_mul_i32 s13, s3, 768")
    a("  v_mul_u32_u24 v143, 320, v3")
    a("  v_lshl_add_u32 v143, v4, 2, v143")
    a("  v_add_u32 v143, s13, v143")
    a("  s_waitcnt vmcnt(21)")
    for i in range(10):
        a(f"  v_lshlrev_b32 v{X+2*i}, 16, v{20+i}")
        a(f"  v_and_b32 v{X+2*i+1}, 0xffff0000, v{20+i}")
    for i in range(10):
        a(f"  v_add_f32 v{144+i}, v{X+2*i}, v{X+2*i+1}")
    for i in range(5):
        a(f"  v_add_f32 v{144+i}, v{144+i}, v{149+i}")
    a("  v_add_f32 v144, v144, v145")
    a("  v_add_f32 v146, v146, v147")
    a("  v_add_f32 v144, v144, v148")
    a("  v_add_f32 v140, v144, v146")

    def half_allreduce(v, t):
        wave_allreduce_row(v)
        a(f"  v_mov_b32 v{t}, v{v}")
        a(f"  v_permlane16_swap_b32 v{v}, v{t}")
        a(f"  v_add_f32 v{v}, v{v}, v{t}")

    def div640(v, t, e):
        a(f"  v_mul_f32 v{t}, 0x3acccccd, v{v}")
        a(f"  v_fma_f32 v{e}, v{t}, s12, v{v}")
        a(f"  v_fmac_f32 v{t}, 0x3acccccd, v{e}")
        a(f"  v_mov_b32 v{v}, v{t}")

    a("  s_mov_b32 s12, 0xc4200000")
    half_allreduce(140, 141)
    div640(140, 141, 142)
    for i in range(20):
        a(f"  v_sub_f32 v{X+i}, v{X+i}, v140")
    a(f"  v_mul_f32 v141, v{X}, v{X}")
    a(f"  v_mul_f32 v142, v{X+1}, v{X+1}")
    for i in range(2, 20, 2):
        a(f"  v_fmac_f32 v141, v{X+i}, v{X+i}")
        a(f"  v_fmac_f32 v142, v{X+i+1}, v{X+i+1}")
    a("  v_add_f32 v141, v141, v142")
    half_allreduce(141, 142)
    div640(141, 142, 144)
    rne(140, 140)
    rne(141, 141)
    a("  v_add_f32 v141, 0x3727c5ac, v141")
    rne(141, 141)
    a("  v_sqrt_f32 v141, v141")
    rne(141, 141)
    a("  v_rcp_f32 v142, v141")
    a("  s_waitcnt vmcnt(20)")
    a("  v_lshlrev_b32 v144, 16, v30")
    a("  v_and_b32 v145, 0xffff0000, v30")
    a("  v_lshlrev_b32 v146, 16, v31")
    a("  v_and_b32 v147, 0xffff0000, v31")
    for i in range(4):
        a(f"  v_sub_f32 v{144+i}, v{144+i}, v140")
    for i in range(4):
        rne(144 + i, 144 + i)
    for i in range(4):
        a(f"  v_mul_f32 v{148+i}, v{144+i}, v142")
    for i in range(4):
        a(f"  v_fma_f32 v{152+i}, -v{148+i}, v141, v{144+i}")
    for i in range(4):
        a(f"  v_fmac_f32 v{148+i}, v{152+i}, v142")
    for i in range(4):
        a(f"  v_cvt_pk_bf16_f32 v{148+i}, v{148+i}, v{148+i}")
    a("  s_mov_b32 exec_lo, 0xfffff")
    a("  s_mov_b32 exec_hi, 0xfffff")
    for g in range(4):
        a(f"  ds_write_b32 v143, v{148+g} offset:{L_XN+80*g}")
    a("  s_mov_b64 exec, -1")
    stub()

    def const_masks(nm, base, vt):
        a(f"  v_and_b32 v{vt}, 1, v0")
        a(f"  v_lshlrev_b32 v{vt}, 4, v{vt}")
        a(f"  v_mov_b32 v{vt+1}, 0xffff")
        a(f"  v_lshlrev_b32 v{vt}, v{vt}, v{vt+1}")
        a(f"  v_bfe_u32 v{vt+1}, v0, 1, {2 if nm == 4 else 1}")
        for j in range(nm):
            a(f"  v_cmp_eq_u32 vcc, {j}, v{vt+1}")
            a(f"  v_cndmask_b32 v{base+j}, 0, v{vt}, vcc")

    a("  s_cmp_eq_u32 s3, 1")
    a("  s_cbranch_scc1 L_aux1")
    a("L_aux0:")
    const_masks(4, 156, 160)
    a("  v_bfe_u32 v11, v0, 3, 1")
    a("  v_lshl_add_u32 v11, v11, 2, v8")
    a("  v_mul_u32_u24 v11, 80, v11")
    a("  s_waitcnt lgkmcnt(0)")
    for i in range(5):
        a(f"  ds_read_b128 v[{120+4*i}:{123+4*i}], v11 offset:{L_XN+16*i}")
    a("  v_lshrrev_b32 v12, 1, v8")
    a("  v_lshlrev_b32 v12, 9, v12")
    a("  v_lshl_add_u32 v12, v9, 5, v12")
    a("  v_and_b32 v13, 1, v8")
    a("  v_lshl_add_u32 v12, v13, 4, v12")
    a("  s_lshl_b32 s12, s11, 10")
    if E1Q:
        a(f"  s_add_u32 s12, s12, {E1Q}")
    a("  v_add_u32 v12, s12, v12")
    a("  v_mov_b32 v14, 0xff")
    a("  s_waitcnt lgkmcnt(0)")
    stamp(1)
    dbg(2)
    for t in range(20):
        A = 140 + 4 * (t & 1)
        for j in range(4):
            a(f"  v_and_b32 v{A+j}, v{120+t}, v{156+j}")
        a(f"  s_waitcnt vmcnt({19-t})")
        c = "0" if t == 0 else "v[148:151]"
        a(f"  v_mfma_f32_16x16x32_bf16 v[148:151], v[{A}:{A+3}], v[{40+4*t}:{43+4*t}], {c}")
    stub()
    get_tag(16)
    tag4(148, 14)
    a("  global_store_dwordx4 v12, v[148:151], s[36:37] sc1")
    lane_tags(36, 16)
    stamp(2)
    dbg(3)
    a("  s_lshl_b32 s12, s4, 13")
    a("  s_lshl_b32 s13, s6, 9")
    a("  s_add_u32 s12, s12, s13")
    a(f"  s_add_u32 s12, s12, {E1Q+4096}")
    a("  v_lshlrev_b32 v12, 3, v0")
    a("  v_add_u32 v12, s12, v12")
    stamp(3)

    inval(range(20, 36))
    tpoll(8, lambda p: a(f"  global_load_dwordx2 v[{20+2*p}:{21+2*p}], v12, s[36:37] offset:{p*1024-4096} sc1"),
          lambda p, m: chk2l(20 + 2 * p, 40, 36, m), 64, cfg.p_q)
    a("  v_add_f32 v42, v20, v22")
    a("  v_add_f32 v43, v21, v23")
    for p in range(2, 8):
        a(f"  v_add_f32 v42, v42, v{20+2*p}")
        a(f"  v_add_f32 v43, v43, v{21+2*p}")
    a("  v_cvt_pk_bf16_f32 v42, v42, v43")
    a("  v_lshlrev_b32 v13, 2, v0")
    a(f"  ds_write_b32 v13, v42 offset:{L_Q}")
    set_lds_flag(F_Q)
    stamp(4)
    dbg(4)
    stub()
    a("  s_lshl_b32 s12, s4, 1")
    a("  s_add_u32 s12, s12, s6")
    a("  s_lshl_b32 s12, s12, 7")
    a(f"  s_add_u32 s12, s12, {E2T}")
    a("  v_lshl_add_u32 v13, v9, 3, s12")
    a("  s_and_b32 s91, s88, 0xffffff")
    a("  s_mov_b32 s92, 0x0c040100")
    inval(range(44, 46))
    wait_lds(F_SP, 1, 16, n=4, sleep=4)

    def chk_s(i, m):
        a("  v_perm_b32 v46, v45, v44, s92")
        a(f"  v_cmp_ne_u32_e64 {m}, s91, v46")
    tpoll(1, lambda i: a("  global_load_dwordx2 v[44:45], v13, s[36:37] sc1"), chk_s, 64, cfg.p_s)
    stamp(5)
    a("  v_and_b32 v20, 0xffff0000, v44")
    a("  v_mov_b32 v22, v20")
    wave_allreduce_row(22, "v_max_f32")
    a("  v_sub_f32 v23, v20, v22")
    a("  v_mul_f32 v23, 0x3fb8aa3b, v23")
    a("  v_exp_f32 v23, v23")
    a("  v_mul_f32 v23, v23, v45")
    wave_allreduce_row(23)
    a("  v_rcp_f32 v24, v23")
    a("  v_fma_f32 v25, -v23, v24, 1.0")
    a("  v_fmac_f32 v24, v25, v24")
    a("  v_mov_b32 v23, v24")
    a(f"  ds_write_b64 v1, v[22:23] offset:{L_ML}")
    stamp(6)
    stamp_flush()
    a("  s_endpgm")
    stub(True)

    a("L_aux1:")
    const_masks(2, 156, 160)
    a("  v_bfe_u32 v11, v0, 2, 1")
    a("  v_lshl_add_u32 v11, v11, 2, v8")
    a("  v_mul_u32_u24 v11, 80, v11")
    a("  s_waitcnt lgkmcnt(0)")
    for i in range(5):
        a(f"  ds_read_b128 v[{120+4*i}:{123+4*i}], v11 offset:{L_XN+768+16*i}")
    a("  v_lshlrev_b32 v12, 8, v8")
    a("  v_lshl_add_u32 v12, v9, 4, v12")
    a("  s_lshl_b32 s12, s11, 9")
    a(f"  s_add_u32 s12, s12, {E1H}")
    a("  v_add_u32 v12, s12, v12")
    a("  v_mov_b32 v14, 0xff")
    a("  s_waitcnt lgkmcnt(0)")
    for t in range(20):
        A = 140 + 2 * (t & 1)
        for j in range(2):
            a(f"  v_and_b32 v{A+j}, v{120+t}, v{156+j}")
        a(f"  s_waitcnt vmcnt({19-t})")
        c = "0" if t == 0 else "v[148:151]"
        a(f"  v_mfma_f32_16x16x16_bf16 v[148:151], v[{A}:{A+1}], v[{40+2*t}:{41+2*t}], {c}")
    stub()
    get_tag(16)
    tag4(148, 14)
    a("  s_mov_b64 exec, 0xffffffff")
    a("  global_store_dwordx4 v12, v[148:151], s[36:37] sc1")
    a("  s_mov_b64 exec, -1")
    lane_tags(36, 16)
    stamp(1)
    a("  s_cmp_lt_u32 s5, 5")
    a("  s_cbranch_scc1 L_aux1_done")
    a("  s_lshl_b32 s12, s4, 12")
    a(f"  s_add_u32 s12, s12, {E1H}")
    a("  v_lshlrev_b32 v12, 3, v0")
    a("  v_add_u32 v12, s12, v12")

    inval(range(20, 36))
    tpoll(8, lambda p: a(f"  global_load_dwordx2 v[{20+2*p}:{21+2*p}], v12, s[36:37] offset:{p*512} sc1"),
          lambda p, m: chk2l(20 + 2 * p, 40, 36, m), 64, cfg.p_h)
    a("  v_add_f32 v42, v20, v22")
    a("  v_add_f32 v43, v21, v23")
    for p in range(2, 8):
        a(f"  v_add_f32 v42, v42, v{20+2*p}")
        a(f"  v_add_f32 v43, v43, v{21+2*p}")
    a("  v_max_f32 v42, 0, v42")
    a("  v_max_f32 v43, 0, v43")
    a("  v_cvt_pk_bf16_f32 v42, v42, v43")
    a("  v_lshlrev_b32 v13, 2, v0")
    a(f"  ds_write_b32 v13, v42 offset:{L_HB}")
    set_lds_flag(F_H)
    a("L_aux1_done:")
    stamp(2)
    stamp_flush()
    a("  s_endpgm")
    stub(True)

    a("L_aux2:")
    a("  s_cmp_eq_u32 s11, 0")
    a("  s_cbranch_scc0 L_a2_poll")
    a("  s_memrealtime s[12:13]")
    a("  s_waitcnt lgkmcnt(0)")
    stamp(0)
    a("  s_mul_i32 s12, s12, 0x9e3779b1")
    a("  s_and_b32 s12, s12, 0x7f7f7f7f")
    a("  s_max_u32 s12, s12, 1")
    a("  v_mov_b32 v16, s12")
    a("  s_mov_b64 exec, 1")
    a("  global_store_dword v1, v16, s[34:35] sc1")
    a("  s_mov_b64 exec, -1")
    a(f"  ds_write_b32 v1, v16 offset:{F_TAG}")
    a("  s_branch L_a2_done")
    a("L_a2_poll:")
    a(f"  s_sleep {cfg.fsleep}")
    a("  s_waitcnt lgkmcnt(0)")
    stamp(0)
    L = lab("fl")
    D = lab("fld")
    a("  s_mov_b32 s9, 0")
    a(f"{L}:")
    a("  global_load_dword v16, v1, s[34:35] sc1")
    a("  s_waitcnt vmcnt(0)")
    a("  v_readfirstlane_b32 s12, v16")
    a("  s_cmp_lg_u32 s12, 0")
    a(f"  s_cbranch_scc1 {D}")
    a(f"  s_sleep {max(cfg.psleep, 4)}")
    a("  s_add_u32 s9, s9, 1")
    a(f"  s_cmp_lt_u32 s9, {cfg.spin_g}")
    a(f"  s_cbranch_scc1 {L}")
    a(f"{D}:")
    a(f"  ds_write_b32 v1, v16 offset:{F_TAG}")
    a("L_a2_done:")
    stamp(2)
    stamp_flush()
    a("  s_endpgm")
    stub(True)

    a("L_aux3:")
    if cfg.dbg:
        a("  s_waitcnt lgkmcnt(0)")
    dbg(1)
    dbg(11, None, True)
    if cfg.walk:
        if cfg.cpf:
            a("  s_waitcnt vmcnt(0)")
        a("  s_branch L_w0")
        a("L_wdone:")
    a("  s_waitcnt lgkmcnt(0)")
    stamp(0)
    a("  s_cmp_ge_u32 s5, 5")
    a("  s_cbranch_scc1 L_aux3_done")
    a("  s_bitcmp1_b32 s4, 0")
    a("  s_cbranch_scc1 L_aux3_done")
    a("  s_lshr_b32 s14, s4, 1")
    a("  s_mul_i32 s14, s14, 5")
    a("  s_add_u32 s14, s14, s5")
    a("  v_and_b32 v3, 3, v0")
    a("  v_lshrrev_b32 v4, 1, v3")
    a("  v_mul_u32_u24 v5, 640, v4")
    a("  v_and_b32 v4, 1, v3")
    a("  v_lshl_add_u32 v5, v4, 2, v5")
    a("  v_lshrrev_b32 v4, 4, v0")
    a("  v_add_u32 v5, v5, v4")
    a("  s_lshl_b32 s8, s14, 3")
    a("  v_add_u32 v5, s8, v5")
    a("  v_lshlrev_b32 v5, 1, v5")
    a("  global_load_ushort v6, v5, s[16:17]")
    a("  v_lshrrev_b32 v7, 2, v0")
    a("  v_mul_u32_u24 v8, 5120, v7")
    a("  v_lshl_add_u32 v8, v3, 4, v8")
    a("  s_lshl_b32 s8, s14, 6")
    a(f"  s_add_u32 s15, s8, {E3F}")
    a("  v_add_u32 v9, s15, v8")
    for i in range(1, 4):
        a(f"  v_add_u32 v{9+i}, {81920*i}, v9")
    a(f"  s_add_u32 s15, s8, {E3A}")
    a("  v_add_u32 v13, s15, v8")
    a("  v_add_u32 v14, 81920, v13")
    get_tag(16)
    inval(range(16, 40))
    a("  s_mov_b32 exec_lo, 0xff000000")
    a("  s_mov_b32 exec_hi, -1")
    for r in range(4):
        a(f"  v_mov_b32 v{28+r}, s{80+r}")
    a("  s_mov_b64 exec, -1")
    stub()
    wait_cnt(CNT_O, 4, 44, sleep=8)
    stamp(1)
    tpoll(4, lambda i: a(f"  global_load_dwordx4 v[{16+4*i}:{19+4*i}], v{9+i}, s[36:37] sc1"),
          lambda i, m: chk4(16 + 4 * i, 44, m), 64, cfg.p_f, init=[-1, -1, -1, 0xffffff])

    def lane_reduce(b):
        a(f"  v_permlane32_swap_b32 v{b}, v{b+2}")
        a(f"  v_permlane32_swap_b32 v{b+1}, v{b+3}")
        a(f"  v_add_f32 v{b}, v{b}, v{b+2}")
        a(f"  v_add_f32 v{b+1}, v{b+1}, v{b+3}")
        a(f"  v_permlane16_swap_b32 v{b}, v{b+1}")
        a(f"  v_add_f32 v{b}, v{b}, v{b+1}")
        for r in (8, 4):
            a(f"  v_add_f32_dpp v{b}, v{b}, v{b} row_ror:{r} row_mask:0xf bank_mask:0xf")
    for r in range(4):
        a(f"  v_add_f32 v{48+r}, v{16+r}, v{20+r}")
        a(f"  v_add_f32 v{52+r}, v{24+r}, v{28+r}")
    for r in range(4):
        a(f"  v_add_f32 v{48+r}, v{48+r}, v{52+r}")
    lane_reduce(48)
    rne(48, 48)
    a("  v_mul_f32 v49, 0xbfb8aa3b, v48")
    a("  v_exp_f32 v49, v49")
    a("  v_add_f32 v49, 1.0, v49")
    a("  v_rcp_f32 v50, v49")
    a("  v_mul_f32 v51, v48, v50")
    a("  v_fma_f32 v52, -v51, v49, v48")
    a("  v_fmac_f32 v51, v52, v50")
    rne(51, 51)
    a("  v_lshlrev_b32 v6, 16, v6")
    wait_lds(F_E3, 1, 44, sleep=1)
    stamp(4)
    tpoll(2, lambda i: a(f"  global_load_dwordx4 v[{32+4*i}:{35+4*i}], v{13+i}, s[36:37] sc1"),
          lambda i, m: chk4(32 + 4 * i, 44, m), 72, cfg.p_a)
    stamp(2)
    dbg(10)
    for r in range(4):
        a(f"  v_add_f32 v{56+r}, v{32+r}, v{36+r}")
    lane_reduce(56)
    rne(56, 56)
    a("  v_mul_f32 v56, v56, v51")
    rne(56, 56)
    a("  v_add_f32 v56, v6, v56")
    a("  v_cvt_pk_bf16_f32 v56, v56, v56")
    if cfg.pad:
        a("  s_mov_b32 s9, 0")
        a("L_pad:")
        a("  s_memrealtime s[98:99]")
        a("  s_waitcnt lgkmcnt(0)")
        a("  s_sub_u32 s8, s98, s96")
        a(f"  s_cmp_ge_u32 s8, {cfg.pad}")
        a("  s_cbranch_scc1 L_padd")
        a("  s_add_u32 s9, s9, 1")
        a("  s_cmp_lt_u32 s9, 100000")
        a("  s_cbranch_scc1 L_pad")
        a("L_padd:")
    a("  s_mov_b32 exec_lo, 0x000f000f")
    a("  s_mov_b32 exec_hi, 0x000f000f")
    a("  global_store_short v5, v56, s[32:33] sc1")
    a("  s_mov_b64 exec, -1")
    dbg(12, None, True)
    dbg(13)
    a("L_aux3_done:")
    stamp(3)
    stamp_flush()
    a("  s_endpgm")
    stub(True)

    a("L_kwave:")
    a("  v_and_b32 v4, 15, v0")
    a("  v_lshlrev_b32 v5, 4, v4")
    a("  s_lshl_b32 s14, s11, 5")
    a("  s_lshl_b32 s15, s10, 3")
    a("  s_add_u32 s14, s14, s15")
    a(f"  s_add_u32 s14, s14, {E2T}")
    a("  v_mov_b32 v12, s14")
    a("  v_bfrev_b32 v11, v4")
    a("  v_lshrrev_b32 v11, 26, v11")
    a("  v_lshrrev_b32 v13, 4, v0")
    a("  v_lshl_add_u32 v11, v13, 7, v11")
    a("  s_lshl_b32 s14, s10, 9")
    a("  v_add_u32 v11, s14, v11")
    a("  v_and_b32 v6, 2, v0")
    a("  v_cmp_ne_u32 s[48:49], 0, v6")
    a("  v_and_b32 v6, 1, v0")
    a("  v_cmp_ne_u32 s[50:51], 0, v6")
    a("  v_mov_b32 v14, 0xff")
    get_tag(6)
    wait_lds(F_Q, 1, 6, sleep=1)
    a(f"  ds_read_b128 v[144:147], v5 offset:{L_Q}")
    a("  s_waitcnt lgkmcnt(0)")
    stamp(2)
    R = lambda t: 16 + 4 * t
    for G in range(8):
        t0 = 4 * G
        a(f"  s_waitcnt vmcnt({28-4*G})")
        for k in range(4):
            for t in range(t0, t0 + 4):
                c = "0" if k == 0 else f"v{R(t)}"
                a(f"  v_dot2_f32_bf16 v{R(t)}, v{R(t)+k}, v{144+k}, {c}")
        for t in (t0, t0 + 2):
            a(f"  v_add_f32_dpp v{R(t)}, v{R(t)}, v{R(t)} row_ror:8 row_mask:0xf bank_mask:0x3")
            a(f"  v_add_f32_dpp v{R(t)}, v{R(t+1)}, v{R(t+1)} row_ror:8 row_mask:0xf bank_mask:0xc")
        a(f"  v_add_f32_dpp v{R(t0)}, v{R(t0)}, v{R(t0)} row_half_mirror row_mask:0xf bank_mask:0x5")
        a(f"  v_add_f32_dpp v{R(t0)}, v{R(t0+2)}, v{R(t0+2)} row_half_mirror row_mask:0xf bank_mask:0xa")
        if G in (2, 6):
            stub()
    for i in range(4):
        x, y = R(8 * i), R(8 * i + 4)
        a(f"  v_cndmask_b32 v{x+1}, v{x}, v{y}, s[48:49]")
        a(f"  v_cndmask_b32 v{x+2}, v{y}, v{x}, s[48:49]")
    for i in range(4):
        x = R(8 * i)
        a(f"  v_add_f32_dpp v{x}, v{x+2}, v{x+1} quad_perm:[2,3,0,1] row_mask:0xf bank_mask:0xf")
    for i in range(2):
        x, y = R(16 * i), R(16 * i + 8)
        a(f"  v_cndmask_b32 v{x+1}, v{x}, v{y}, s[50:51]")
        a(f"  v_cndmask_b32 v{x+2}, v{y}, v{x}, s[50:51]")
    for i in range(2):
        x = R(16 * i)
        a(f"  v_add_f32_dpp v{x}, v{x+2}, v{x+1} quad_perm:[1,0,3,2] row_mask:0xf bank_mask:0xf")
    S0, S1 = R(0), R(16)
    a(f"  v_cvt_pk_bf16_f32 v6, v{S0}, v{S1}")
    a("  v_lshlrev_b32 v7, 16, v6")
    a("  v_and_b32 v8, 0xffff0000, v6")
    a("  v_mul_f32 v7, 0x3db504f3, v7")
    a("  v_mul_f32 v8, 0x3db504f3, v8")
    a("  v_cvt_pk_bf16_f32 v6, v7, v8")
    a("  v_lshlrev_b32 v148, 16, v6")
    a("  v_and_b32 v149, 0xffff0000, v6")
    a("  v_max_f32 v150, v148, v149")
    wave_allreduce_row(150, "v_max_f32")
    a("  v_mov_b32 v10, v150")
    a("  v_permlane16_swap_b32 v150, v10")
    a("  v_max_f32 v150, v150, v10")
    a("  v_mov_b32 v10, v150")
    a("  v_permlane32_swap_b32 v150, v10")
    a("  v_max_f32 v150, v150, v10")
    a("  v_sub_f32 v7, v148, v150")
    a("  v_sub_f32 v8, v149, v150")
    a("  v_mul_f32 v7, 0x3fb8aa3b, v7")
    a("  v_mul_f32 v8, 0x3fb8aa3b, v8")
    a("  v_exp_f32 v7, v7")
    a("  v_exp_f32 v8, v8")
    a("  v_add_f32 v151, v7, v8")
    wave_allreduce_row(151)
    a("  v_mov_b32 v10, v151")
    a("  v_permlane16_swap_b32 v151, v10")
    a("  v_add_f32 v151, v151, v10")
    a("  v_mov_b32 v10, v151")
    a("  v_permlane32_swap_b32 v151, v10")
    a("  v_add_f32 v151, v151, v10")
    a("  s_and_b32 s8, s88, 0xffff")
    a("  v_or_b32 v150, s8, v150")
    a("  v_add_u32 v151, s86, v151")
    a("  v_bfi_b32 v151, v14, s82, v151")
    a("  s_mov_b64 exec, 1")
    a("  global_store_dwordx2 v12, v[150:151], s[36:37] sc1")
    a("  s_mov_b64 exec, -1")
    a("  s_lshl_b32 s12, s10, 2")
    a("  v_mov_b32 v13, s12")
    a(f"  ds_write_b32 v13, v2 offset:{F_SP}")
    stamp(3)
    dbg(6, 4)
    stub()
    a("  s_lshl_b32 s14, s5, 2")
    a("  s_add_u32 s14, s14, s10")
    tile_params(14)
    a("  v_lshrrev_b32 v8, 4, v0")
    a("  v_and_b32 v9, 15, v0")
    a("  v_mul_u32_u24 v10, 8*1280, v8")
    a("  v_lshl_add_u32 v10, v9, 4, v10")
    e3_lane_off(12, 13)
    a("  v_add_u32 v12, s70, v12")
    a("  s_cmp_eq_u32 s72, 1")
    a("  s_cselect_b32 s44, s24, s30")
    a("  s_cselect_b32 s45, s25, s31")
    a("  s_and_b32 s45, s45, 0xffff")
    a(f"  s_mov_b32 s47, {1728*1280}")
    a(f"  s_cselect_b32 s46, {4096*1280}, s47")
    a("  s_mov_b32 s47, 0x20000")
    a("  s_add_u32 s13, s71, 5120")

    def tile_loads():
        for i in range(8):
            so = "s71" if i < 4 else "s13"
            a(f"  buffer_load_dwordx4 v[{16+4*i}:{19+4*i}], v10, s[44:47], {so} offen offset:{(i&3)*1280} {cfg.nt_wo}")
    L = lab("ml")
    D = lab("mld")
    a("  s_mov_b32 s9, 0")
    a(f"{L}:")
    a(f"  ds_read_b64 v[150:151], v1 offset:{L_ML}")
    a("  s_waitcnt lgkmcnt(0)")
    a("  v_readfirstlane_b32 s8, v151")
    a("  s_cmp_lg_u32 s8, 0")
    a(f"  s_cbranch_scc1 {D}")
    a("  s_sleep 1")
    a("  s_add_u32 s9, s9, 1")
    a(f"  s_cmp_lt_u32 s9, {SPIN_L}")
    a(f"  s_cbranch_scc1 {L}")
    a(f"{D}:")
    stamp(4)
    a("  v_sub_f32 v7, v148, v150")
    a("  v_sub_f32 v6, v149, v150")
    a("  v_mul_f32 v7, 0x3fb8aa3b, v7")
    a("  v_mul_f32 v6, 0x3fb8aa3b, v6")
    a("  v_exp_f32 v7, v7")
    a("  v_exp_f32 v6, v6")
    a("  v_mul_f32 v7, v7, v151")
    a("  v_mul_f32 v6, v6, v151")
    a("  v_cvt_pk_bf16_f32 v7, v7, v7")
    a("  v_cvt_pk_bf16_f32 v6, v6, v6")
    a(f"  ds_write_b32 v11, v7 offset:{L_P}")
    a(f"  ds_write_b32 v11, v6 offset:{L_P+64}")
    a("  s_lshl_b32 s12, s10, 2")
    a("  v_mov_b32 v13, s12")
    a(f"  ds_write_b32 v13, v2 offset:{F_P}")
    stamp(5)
    dbg(7, 4)
    a("  s_cmp_eq_u32 s72, 0")
    a("  s_cbranch_scc1 L_k_done")
    LG = lab("tg")
    g1 = cfg.gate_wo
    g2 = cfg.gate_w2
    if g1 != g2:
        a(f"  s_cmp_eq_u32 s72, {2 if g1 else 1}")
        a(f"  s_cbranch_scc1 {LG}")
    if g1 or g2:
        wait_lds(F_VI, 1, 144, n=4, sleep=2)
    a(f"{LG}:")
    tile_loads()
    a("  v_and_b32 v3, 3, v0")
    a("  v_lshlrev_b32 v3, 9, v3")
    a("  v_bfe_u32 v4, v0, 3, 1")
    a("  v_lshl_add_u32 v3, v4, 11, v3")
    a("  v_bfe_u32 v4, v0, 2, 1")
    a("  v_lshl_add_u32 v3, v4, 4, v3")
    a("  v_lshl_add_u32 v3, v8, 5, v3")
    a("  s_lshl_b32 s14, s4, 12")
    a("  s_lshl_b32 s15, s74, 7")
    a("  s_add_u32 s14, s14, s15")
    a(f"  s_add_u32 s14, s14, {E2O}")
    a("  v_add_u32 v3, s14, v3")
    a("  v_bfe_u32 v4, v0, 3, 1")
    a("  v_lshlrev_b32 v4, 7, v4")
    a("  v_lshl_add_u32 v4, v8, 4, v4")
    a("  s_lshl_b32 s14, s74, 6")
    a("  v_add_u32 v4, s14, v4")
    a("  v_bfe_u32 v5, v0, 4, 1")
    a("  v_cmp_eq_u32 s[48:49], 0, v5")
    a("  v_bfe_u32 v5, v0, 2, 1")
    a("  v_cmp_eq_u32 s[52:53], 0, v5")
    a("  s_mov_b32 s14, 0x05040100")
    a("  s_mov_b32 s15, 0x07060302")
    a("  s_waitcnt vmcnt(0)")
    stamp(6)
    for d in range(4):
        for q in range(4):
            ev = 16 + 4 * (2 * q) + d
            od = 16 + 4 * (2 * q + 1) + d
            a(f"  v_perm_b32 v{48+4*(2*d)+q}, v{od}, v{ev}, s14")
            a(f"  v_perm_b32 v{48+4*(2*d+1)+q}, v{od}, v{ev}, s15")
    stub()
    a("  s_cmp_eq_u32 s72, 1")
    a("  s_cbranch_scc1 L_t_wo")
    wait_lds(F_H, 1, 144, sleep=2)
    a(f"  ds_read_b128 v[112:115], v4 offset:{L_HB}")
    a("  s_waitcnt lgkmcnt(0)")
    a("  s_branch L_t_mm")
    a("L_t_wo:")

    inval(range(88, 92))
    wait_cnt(CNT_O, 4, 84, sleep=2)
    tpoll(1, lambda i: a("  global_load_dwordx4 v[88:91], v3, s[36:37] sc1"), lambda i, m: chk4(88, 84, m), 54, cfg.p_o)
    stamp(7)
    for r in range(4):
        a(f"  v_add_f32_dpp v{80+r}, v{88+r}, v{88+r} quad_perm:[1,0,3,2] row_mask:0xf bank_mask:0xf")
    for r in range(4):
        a(f"  v_add_f32_dpp v{80+r}, v{80+r}, v{80+r} quad_perm:[2,3,0,1] row_mask:0xf bank_mask:0xf")
    a("  v_cvt_pk_bf16_f32 v112, v80, v81")
    a("  v_cvt_pk_bf16_f32 v113, v82, v83")
    a("  v_mov_b32 v114, v112")
    a("  v_mov_b32 v115, v113")
    a("  v_mov_b32_dpp v84, v112 row_half_mirror row_mask:0xf bank_mask:0xf")
    a("  v_mov_b32_dpp v85, v113 row_half_mirror row_mask:0xf bank_mask:0xf")
    a("  v_cndmask_b32 v112, v84, v112, s[52:53]")
    a("  v_cndmask_b32 v113, v85, v113, s[52:53]")
    a("  v_cndmask_b32 v114, v114, v84, s[52:53]")
    a("  v_cndmask_b32 v115, v115, v85, s[52:53]")
    a("L_t_mm:")
    for x in range(8):
        a(f"  v_mfma_f32_16x16x32_bf16 v[{116+4*x}:{119+4*x}], v[112:115], v[{48+4*x}:{51+4*x}], 0")
    for r in range(4):
        a(f"  v_cndmask_b32 v{80+r}, v{116+4*(4+r)}, v{116+4*r}, s[48:49]")
    a("  s_cmp_eq_u32 s72, 1")
    a("  s_cbranch_scc0 L_t_pub")
    a("  v_lshlrev_b32 v4, 4, v0")
    a("  s_lshl_b32 s12, s10, 10")
    a("  v_add_u32 v5, s12, v4")
    a(f"  ds_write_b128 v5, v[80:83] offset:{L_R}")
    a("  s_mov_b64 exec, 1")
    a(f"  ds_add_rtn_u32 v6, v1, v2 offset:{CNT_E}")
    a("  s_mov_b64 exec, -1")
    a("  s_waitcnt lgkmcnt(0)")
    a("  v_readfirstlane_b32 s8, v6")
    a("  s_cmp_eq_u32 s8, 3")
    a("  s_cbranch_scc0 L_k_done")
    for w in range(4):
        a(f"  ds_read_b128 v[{96+4*w}:{99+4*w}], v4 offset:{L_R+1024*w}")
    a("  s_waitcnt lgkmcnt(0)")
    for r in range(4):
        a(f"  v_add_f32 v{96+r}, v{96+r}, v{100+r}")
        a(f"  v_add_f32 v{104+r}, v{104+r}, v{108+r}")
    for r in range(4):
        a(f"  v_add_f32 v{80+r}, v{96+r}, v{104+r}")
    tag4(80, 14)
    a("  global_store_dwordx4 v12, v[80:83], s[36:37] sc1")
    set_lds_flag(F_E3)
    a("  s_branch L_k_done")
    a("L_t_pub:")
    tag4(80, 14)
    a("  global_store_dwordx4 v12, v[80:83], s[36:37] sc1")
    a("L_k_done:")
    stamp(8)
    dbg(9, 4)
    stamp_flush()
    a("  s_endpgm")
    stub(True)

    a("L_vwave:")
    const_masks(4, 160, 6)
    a("  v_lshrrev_b32 v6, 4, v0")
    a("  v_lshlrev_b32 v6, 7, v6")
    a("  s_lshl_b32 s12, s10, 9")
    a("  v_add_u32 v6, s12, v6")
    a("  v_and_b32 v7, 15, v0")
    a("  v_lshlrev_b32 v7, 5, v7")
    a("  v_bfe_u32 v8, v0, 4, 1")
    a("  v_lshl_add_u32 v7, v8, 4, v7")
    a("  v_add_u32 v7, s12, v7")
    a("  s_lshl_b32 s12, s11, 9")
    a(f"  s_add_u32 s12, s12, {E2O}")
    a("  v_lshl_add_u32 v9, v0, 4, s12")
    a("  v_lshlrev_b32 v10, 4, v0")
    a("  v_mov_b32 v11, 0xff")
    get_tag(8)
    wait_lds(F_P, 4, 8, sleep=1)
    a(f"  ds_read_b128 v[144:147], v6 offset:{L_P}")
    stamp(2)
    for q in range(8):
        pb = 144 + 4 * (q & 1)
        if q < 7:
            nb = 144 + 4 * ((q + 1) & 1)
            a(f"  ds_read_b128 v[{nb}:{nb+3}], v6 offset:{L_P+16*(q+1)}")
            a("  s_waitcnt lgkmcnt(1)")
        else:
            a("  s_waitcnt lgkmcnt(0)")
        for u in range(4):
            t = 4 * q + u
            A = 152 + 4 * (t & 1)
            for j in range(4):
                a(f"  v_and_b32 v{A+j}, v{pb+u}, v{160+j}")
            a(f"  s_waitcnt vmcnt({31-t})")
            c = "0" if t == 0 else "v[164:167]"
            a(f"  v_mfma_f32_16x16x32_bf16 v[164:167], v[{A}:{A+3}], v[{16+4*t}:{19+4*t}], {c}")
        if q == 3:
            stub()
    stamp(3)
    dbg(8, 8)
    a("  s_mov_b64 exec, 0xffffffff")
    a(f"  ds_write_b128 v7, v[164:167] offset:{L_O}")
    a("  s_mov_b64 exec, 1")
    a(f"  ds_add_rtn_u32 v8, v1, v2 offset:{CNT_O}")
    a("  s_mov_b64 exec, -1")
    a("  s_waitcnt lgkmcnt(0)")
    a("  v_readfirstlane_b32 s8, v8")
    a("  s_cmp_eq_u32 s8, 3")
    a("  s_cbranch_scc0 L_v_done")
    a("  s_mov_b64 exec, 0xffffffff")
    for w in range(4):
        a(f"  ds_read_b128 v[{16+4*w}:{19+4*w}], v10 offset:{L_O+512*w}")
    a("  s_waitcnt lgkmcnt(0)")
    for r in range(4):
        a(f"  v_add_f32 v{16+r}, v{16+r}, v{20+r}")
        a(f"  v_add_f32 v{24+r}, v{24+r}, v{28+r}")
    for r in range(4):
        a(f"  v_add_f32 v{16+r}, v{16+r}, v{24+r}")
    tag4(16, 11)
    a("  global_store_dwordx4 v9, v[16:19], s[36:37] sc1")
    a("  s_mov_b64 exec, -1")
    a("L_v_done:")
    stamp(4)
    stamp_flush()
    a("  s_endpgm")
    if cfg.walk:
        a(f"L_w{nstub[0]}:")
        a("  s_branch L_wdone")
    a("L_end:")
    a("  s_endpgm")
    a('.section .rodata,"a"')
    a(".p2align 6")
    a(f".amdhsa_kernel {NAME}_kernel")
    a("  .amdhsa_next_free_vgpr 168")
    a("  .amdhsa_next_free_sgpr 102")
    a("  .amdhsa_accum_offset 168")
    a("  .amdhsa_group_segment_fixed_size 0")
    a("  .amdhsa_kernarg_size 88")
    a("  .amdhsa_user_sgpr_count 2")
    a("  .amdhsa_user_sgpr_kernarg_segment_ptr 1")
    a("  .amdhsa_system_sgpr_workgroup_id_x 1")
    a(".end_amdhsa_kernel")
    return a.resolve() + "\n"


if __name__ == "__main__":
    out = sys.argv[1] if len(sys.argv) > 1 else f"cdna_kernels/{NAME}.s"

    class C(Cfg):
        pass
    for kv in sys.argv[2:]:
        k, v = kv.split("=")
        cur = getattr(C, k)
        if isinstance(cur, bool):
            v = v in ("1", "True", "true")
        elif isinstance(cur, int):
            v = int(v)
        setattr(C, k, v)
    open(out, "w").write(gen(C))
```
